```python
import torch

def _softmax(x, axis=-1):
    return torch.softmax(x, dim=axis)
def _gelu(x):
    return torch.nn.functional.gelu(x, approximate="tanh")
def _silu(x):
    return torch.nn.functional.silu(x)
def _sigmoid(x):
    return torch.sigmoid(x)
def _layernorm(x, axis=-1, eps=1e-5):
    m = x.mean(dim=axis, keepdim=True)
    v = x.var(dim=axis, keepdim=True, unbiased=False)
    return (x - m) / torch.sqrt(v + eps)
def _scatter_add(tgt, idx, src, axis=0):
    return tgt.clone().index_add_(axis, idx, src)
def _segment_sum(src, seg, n):
    out = torch.zeros((n,) + src.shape[1:], dtype=src.dtype)
    return out.index_add_(0, seg, src)
def _pad(x, pw):
    flat = tuple(v for pair in reversed(pw) for v in pair)
    return torch.nn.functional.pad(x, flat)

kernel_name = 'gated_mix__spectral_gfnet__dense_activation_silu__prompt'

def setup_inputs():

    _w = (lambda a: (lambda t: t.to(torch.bfloat16) if t.is_floating_point() else t)(torch.as_tensor(a)))
    def _A_setup():
        B, S, D = 1, 2048, 1024
        Df = D // 2 + 1
        return {
            "x": _w((lambda *s: torch.randn(*s, dtype=torch.bfloat16) * 0.05)(B, S, D)),
            "w_r": _w((lambda *s: torch.randn(*s, dtype=torch.bfloat16) * 0.8)(S, Df) * 0.02),
            "w_i": _w((lambda *s: torch.randn(*s, dtype=torch.bfloat16) * 0.8)(S, Df) * 0.02),
        }
    _A_in = _A_setup()

    def _B_setup():
        B, S, D, F = 1, 2048, 1024, 3584
        return {
            "x": _w((lambda *s: torch.randn(*s, dtype=torch.bfloat16) * 0.05)(B, S, D)),
            "w1": _w((lambda *s: torch.randn(*s, dtype=torch.bfloat16) * 3.2)(D, F) * (D ** -0.5)),
            "w2": _w((lambda *s: torch.randn(*s, dtype=torch.bfloat16) * 0.05)(F, D) * (F ** -0.5)),
        }
    _B_in = _B_setup()

    return {
        "A_x": _A_in["x"],
        "A_w_r": _A_in["w_r"],
        "A_w_i": _A_in["w_i"],
        "B_x": _B_in["x"],
        "B_w1": _B_in["w1"],
        "B_w2": _B_in["w2"],
        "gate_w": _w((lambda *s: torch.randn(*s, dtype=torch.bfloat16) * 0.05)(1024) * 16.0),
    }

def reference(A_x, A_w_r, A_w_i, B_x, B_w1, B_w2, gate_w):
    def _A_ref(x, w_r, w_i):
        B, S, D = x.shape
        X = (lambda x, axes=(-2,-1): torch.fft.rfft2(x.float(), dim=axes))(x, axes=(-2, -1))
        W = w_r + 1j * w_i
        X = X * W
        y = (lambda x, s, axes=(-2,-1): torch.fft.irfft2(x, s=s, dim=axes).to(torch.bfloat16))(X, (S, D), axes=(-2, -1))
        return y

    def _B_ref(x, w1, w2):
        h = torch.einsum("bsd,df->bsf", x, w1)
        h = _silu(h)
        out = torch.einsum("bsf,fd->bsd", h, w2)
        return out

    x = A_x
    g = _sigmoid((x * gate_w).sum(-1, keepdims=True))
    a = _A_ref(x, A_w_r, A_w_i)
    b = _B_ref(x, B_w1, B_w2)
    return g * a + (1 - g) * b
```

```python
class Asm:
    def __init__(self):
        self.lines = []
        self.uid = 0
    def __call__(self, s=''):
        for ln in s.split('\n'):
            self.lines.append(ln if (ln.strip().endswith(':') or ln.startswith('.') or ln.startswith(';')) else '  ' + ln.strip())
    def label(self, name):
        self.lines.append(name + ':')
    def newlabel(self, base):
        self.uid += 1
        return f'L_{base}_{self.uid}'
    def text(self):
        return '\n'.join(self.lines) + '\n'

def vr(i, n=1):
    return f'v{i}' if n == 1 else f'v[{i}:{i+n-1}]'
def ar(i, n=1):
    return f'a{i}' if n == 1 else f'a[{i}:{i+n-1}]'
def sr(i, n=1):
    return f's{i}' if n == 1 else f's[{i}:{i+n-1}]'

def interleave(main, fill, start=0, every=1, per=1):
    out = []
    fi = 0
    for i, m in enumerate(main):
        out.append(m)
        if i >= start and (i - start) % every == 0:
            for _ in range(per):
                if fi < len(fill):
                    out.append(fill[fi]); fi += 1
    out.extend(fill[fi:])
    return out

def kernel_header(A, name):
    A.lines.append('.text')
    A.lines.append(f'.globl {name}')
    A.lines.append('.p2align 8')
    A.lines.append(f'.type {name},@function')
    A.lines.append(f'{name}:')

def kernel_desc(A, name, nvgpr, accum_offset, nsgpr=102):
    A.lines.append('.section .rodata,"a"')
    A.lines.append('.p2align 6')
    A.lines.append(f'.amdhsa_kernel {name}')
    A.lines.append(f'  .amdhsa_next_free_vgpr {nvgpr}')
    A.lines.append(f'  .amdhsa_next_free_sgpr {nsgpr}')
    A.lines.append(f'  .amdhsa_accum_offset {accum_offset}')
    A.lines.append('  .amdhsa_group_segment_fixed_size 0')
    A.lines.append('  .amdhsa_kernarg_size 80')
    A.lines.append('  .amdhsa_user_sgpr_count 2')
    A.lines.append('  .amdhsa_user_sgpr_kernarg_segment_ptr 1')
    A.lines.append('  .amdhsa_system_sgpr_workgroup_id_x 1')
    A.lines.append('.end_amdhsa_kernel')
    A.lines.append('.text')

def srd(A, s, ptr, nbytes):
    A(f's_mov_b32 s{s}, s{ptr}')
    A(f's_mov_b32 s{s+1}, s{ptr+1}')
    A(f's_mov_b32 s{s+2}, {hex(nbytes)}')
    A(f's_mov_b32 s{s+3}, 0x20000')
```

```python
import sys
sys.path.insert(0, 'dev')
from asmlib import *
import importlib

HDR = open('gated_mix__spectral_gfnet__dense_activation_silu__prompt.s.ref').read().split('; Override launch geometry')[0] \
    if False else None

def build(kernels, opt=None):
    opt = opt or {}
    A = Asm()
    for label, fn, grid, block, lds in kernels:
        A.lines.append(f'; @launch kernel={label} grid=({grid},1,1) block=({block},1,1) lds={lds}')
    A.lines.append('.amdgcn_target "amdgcn-amd-amdhsa--gfx950"')
    done = set()
    for label, fn, grid, block, lds in kernels:
        if label in done: continue
        done.add(label)
        fn(A, label, opt)
    return A.text()
```

```python
import sys, struct
sys.path.insert(0, 'dev')
from asmlib import *
from layout import *

def f32hex(x):
    return '0x%08x' % struct.unpack('<I', struct.pack('<f', x))[0]

STG = 45056
WS_GV = WS_G + 8192

def gen_k1(A, name, opt=None):
    opt = opt or {}
    kernel_header(A, name)
    A('s_cmp_ge_u32 s2, 256\ns_cbranch_scc1 K1_end')
    A('s_load_dwordx2 s[4:5], s[0:1], 0')
    A('s_load_dwordx2 s[6:7], s[0:1], 72')
    A('s_load_dwordx2 s[28:29], s[0:1], 32')
    A('s_load_dwordx2 s[88:89], s[0:1], 48')
    if opt.get('stamp'): A('s_memrealtime s[90:91]')
    A('v_lshrrev_b32 v1, 6, v0\ns_nop 0\nv_readfirstlane_b32 s20, v1')
    A('s_and_b32 s21, s2, 7\ns_lshr_b32 s22, s2, 3')
    A('s_lshr_b32 s23, s21, 2          ; mg')
    A('s_and_b32 s27, s21, 3           ; ng')
    A('s_and_b32 s24, s22, 7\ns_lshl_b32 s23, s23, 3\ns_add_u32 s24, s24, s23     ; i')
    A('s_lshr_b32 s25, s22, 3\ns_lshl_b32 s23, s27, 2\ns_add_u32 s25, s25, s23    ; j')
    A('s_add_u32 s26, s24, s25\ns_and_b32 s26, s26, 3   ; c')
    A('s_cmp_ge_u32 s20, 4\ns_cbranch_scc1 K1_producer')

    ACC = 0
    LANE, VAE, VAO, VB0, VB1 = 112, 113, 114, 115, 116
    T0 = 117
    A(f'v_and_b32 v{LANE}, 63, v0')
    A('s_lshr_b32 s31, s20, 1     ; fh\ns_and_b32 s32, s20, 1      ; th')
    A(f'v_lshrrev_b32 v1, 4, v{LANE}       ; g4')
    A(f'v_bfe_u32 v2, v{LANE}, 2, 2        ; r')
    A(f'v_and_b32 v3, 3, v{LANE}           ; c')
    A('v_lshl_add_u32 v4, v1, 3, v2\nv_mul_u32_u24 v4, 448, v4\nv_lshl_add_u32 v4, v3, 3, v4')
    A('s_mul_i32 s33, s31, 224\ns_add_u32 s33, s33, 16384\nv_add_u32 v4, s33, v4')
    A('v_and_b32 v5, 1, v1\nv_lshlrev_b32 v5, 5, v5      ; s*32')
    A('v_add_u32 v6, v4, v5\nv_sub_u32 v7, v4, v5')
    A('s_cmp_eq_u32 s31, 0')
    A('s_cselect_b64 vcc, -1, 0')
    A(f'v_cndmask_b32 v{VAE}, v7, v6, vcc\nv_cndmask_b32 v{VAO}, v6, v7, vcc')
    A(f'v_and_b32 v4, 15, v{LANE}\nv_lshrrev_b32 v5, 1, v4\nv_xor_b32 v5, v5, v1\nv_lshlrev_b32 v5, 4, v5')
    A(f'v_lshl_add_u32 v5, v4, 7, v5\ns_lshl_b32 s33, s32, 13\nv_add_u32 v{VB0}, s33, v5\nv_xor_b32 v{VB1}, 64, v{VB0}')
    for i in range(112): A(f'v_mov_b32 v{ACC+i}, 0')
    INLOOP = [False]
    def aslot(a, s):
        return (a if a < 6 else 6 + (s & 1)) * 8
    def readA(a, s):
        va = VAE if a % 2 == 0 else VAO
        base = aslot(a, s); L = []
        if opt.get('cnoA') and INLOOP[0]: return L
        for ks in range(2):
            off = ks * 32 * 448 + a * 32
            L.append(f'ds_read_b64_tr_b16 a[{base+4*ks}:{base+4*ks+1}], v{va} offset:{off}')
            L.append(f'ds_read_b64_tr_b16 a[{base+4*ks+2}:{base+4*ks+3}], v{va} offset:{off+4*448}')
        return L
    def readB(s):
        base = 64 + (s & 1) * 32; L = []
        if opt.get('cnoB') and INLOOP[0]: return L
        for b in range(4):
            for ks in range(2):
                r = base + (b*2+ks)*4
                L.append(f'ds_read_b128 a[{r}:{r+3}], v{VB0 if ks == 0 else VB1} offset:{b*2048}')
        return L
    def group(a, s):
        base = aslot(a, s); bb = 64 + (s & 1) * 32; L = []
        for b in range(4):
            acc = ACC + (a*4+b)*4
            for ks in range(2):
                r = bb + (b*2+ks)*4
                L.append(f'v_mfma_f32_16x16x32_bf16 v[{acc}:{acc+3}], a[{base+4*ks}:{base+4*ks+3}], a[{r}:{r+3}], v[{acc}:{acc+3}]')
        return L
    def advance():
        return (['s_add_u32 s40, s40, 1', 's_cmp_eq_u32 s40, 3', 's_cselect_b32 s41, s44, s43', 's_cselect_b32 s40, 0, s40'],
                [f'v_add_u32 v{r}, s41, v{r}' for r in (VAE, VAO, VB0, VB1)])
    A('s_barrier')
    for x in readB(0): A(x)
    for a in (0, 1, 2, 3, 4, 6):
        for x in readA(a, 0): A(x)
    A(f's_mov_b32 s40, 0\ns_mov_b32 s42, 8\ns_mov_b32 s43, {STG}\ns_mov_b32 s44, {-2*STG & 0xffffffff}')
    A('s_waitcnt lgkmcnt(0)')
    if opt.get('stamp'): A('s_memrealtime s[92:93]\ns_memtime s[84:85]')
    A('.p2align 6')
    A.label('K1_c_loop')
    INLOOP[0] = True
    for s in range(2):
        sa, va = advance()
        g0 = group(0, s)
        f0 = readA(5, s)
        L = interleave(g0, f0, start=0, every=1, per=2)
        for x in interleave(L, sa, start=8, every=1, per=1): A(x)
        for x in va: A(x)
        A('s_waitcnt lgkmcnt(0)')
        A('s_barrier')
        fills = [[] for _ in range(7)]
        fills[1] = readB(s+1)
        fills[2] = readA(0, s+1) + readA(6, s+1)
        for a in range(1, 5): fills[a+2] = readA(a, s+1)
        for a in range(1, 7):
            for x in interleave(group(a, s), fills[a], start=0, every=1, per=1): A(x)
    A('s_sub_u32 s42, s42, 1\ns_cmp_lg_u32 s42, 0\ns_cbranch_scc1 K1_c_loop')
    A('s_waitcnt lgkmcnt(0)')
    if opt.get('stamp'): A('s_memrealtime s[94:95]\ns_memtime s[86:87]')
    A(f's_add_u32 s8, s6, {WS_H}\ns_addc_u32 s9, s7, 0\ns_mov_b32 s10, {16 << 20}\ns_mov_b32 s11, 0x20000')
    A('s_lshl_b32 s33, s24, 20\ns_mul_i32 s34, s25, 57344\ns_add_u32 s33, s33, s34     ; i*1MB + 7j*8192')
    A('s_lshl_b32 s34, s32, 12\ns_add_u32 s33, s33, s34     ; + th*4*1024')
    A(f'v_lshlrev_b32 v{T0}, 4, v{LANE}')
    A(f'v_add_u32 v{T0+1}, 8, v{T0}')
    A('s_nop 7')
    NL2E = f32hex(-1.4426950408889634)
    TT = T0 + 2
    def silu(regs):
        n = len(regs)
        for k, r in enumerate(regs): A(f'v_mul_f32 v{TT+k}, {NL2E}, v{r}')
        for k in range(n): A(f'v_exp_f32 v{TT+k}, v{TT+k}')
        for k in range(n): A(f'v_add_f32 v{TT+k}, 1.0, v{TT+k}')
        for k in range(n): A(f'v_rcp_f32 v{TT+k}, v{TT+k}')
        if n < 4: A('s_nop 0')
        for k, r in enumerate(regs): A(f'v_mul_f32 v{r}, v{r}, v{TT+k}')
    for fh in range(2):
        if fh == 0: A('s_cmp_lg_u32 s31, 0\ns_cbranch_scc1 K1_epi1')
        else: A.label('K1_epi1')
        if fh == 0: items = [((0, 1), 0), ((2, 3), 1), ((4, 5), 2), ((6,), 3)]
        else: items = [((0,), 3), ((1, 2), 4), ((3, 4), 5), ((5, 6), 6)]
        for b in range(4):
            for tiles, q in items:
                regs = []
                for a in tiles: regs += [ACC + (a*4+b)*4 + j for j in range(4)]
                silu(regs)
                r0 = regs[0]
                if len(tiles) == 2:
                    A(f'v_cvt_pk_bf16_f32 v{r0}, v{regs[0]}, v{regs[1]}\nv_cvt_pk_bf16_f32 v{r0+1}, v{regs[2]}, v{regs[3]}')
                    A(f'v_cvt_pk_bf16_f32 v{r0+2}, v{regs[4]}, v{regs[5]}\nv_cvt_pk_bf16_f32 v{r0+3}, v{regs[6]}, v{regs[7]}')
                    A(f's_add_u32 s34, s33, {q*8192 + b*1024}')
                    A(f'buffer_store_dwordx4 v[{r0}:{r0+3}], v{T0}, s[8:11], s34 offen')
                else:
                    A(f'v_cvt_pk_bf16_f32 v{r0}, v{regs[0]}, v{regs[1]}\nv_cvt_pk_bf16_f32 v{r0+1}, v{regs[2]}, v{regs[3]}')
                    A(f's_add_u32 s34, s33, {q*8192 + b*1024}')
                    A(f'buffer_store_dwordx2 v[{r0}:{r0+1}], v{T0 if fh == 0 else T0+1}, s[8:11], s34 offen')
        A('s_branch K1_fin')
    A.label('K1_fin')
    if opt.get('stamp'):
        A('s_waitcnt vmcnt(0)\ns_memrealtime s[96:97]\ns_waitcnt lgkmcnt(0)')
        A(f's_add_u32 s8, s6, {WS_DBG}\ns_addc_u32 s9, s7, 0\ns_mov_b32 s10, 65536\ns_mov_b32 s11, 0x20000')
        A('s_cmp_lg_u32 s20, 0\ns_cbranch_scc1 K1_end')
        A('s_lshl_b32 s33, s2, 5\ns_sub_u32 s86, s86, s84')
        A(f'v_cmp_eq_u32 vcc, 0, v{LANE}\ns_and_saveexec_b64 s[46:47], vcc\ns_cbranch_execz K1_end')
        for k, sreg in enumerate([90, 92, 94, 96, 86]):
            A(f'v_mov_b32 v{TT}, s{sreg}\nv_mov_b32 v{TT+1}, s33\nbuffer_store_dword v{TT}, v{TT+1}, s[8:11], 0 offen offset:{4*k}')
    A('s_branch K1_end')

    A.label('K1_producer')
    NBAR = [0]
    def stamp():
        if opt.get('pstamp'):
            A(f's_memtime s[98:99]\ns_waitcnt lgkmcnt(0)\nv_writelane_b32 v19, s98, {NBAR[0]}')
            NBAR[0] += 1
    PL = 0
    A('v_and_b32 v0, 63, v0')
    A('s_sub_u32 s31, s20, 4        ; p')
    A('s_waitcnt lgkmcnt(0)')
    srd(A, 8, 4, 2048*1024*2)
    srd(A, 12, 28, 1024*3584*2)
    A('s_lshl_b32 s33, s24, 11       ; i*2048')
    A('s_mul_i32 s34, s31, 114688\ns_mul_i32 s35, s25, 448\ns_add_u32 s34, s34, s35')
    for t in range(16):
        A(f's_add_u32 s36, s27, {t >> 2}\ns_and_b32 s36, s36, 3\ns_lshl_b32 s36, s36, 2')
        A(f's_add_u32 s37, s26, {t & 3}\ns_and_b32 s37, s37, 3\ns_add_u32 s36, s36, s37     ; kappa')
        if opt.get('wrap') : A('s_mov_b32 s36, s27')
        if opt.get('norot'): A(f's_mov_b32 s36, {t}')
        if t == 0: A('s_mov_b32 s38, s36')
        A(f's_lshl_b32 s37, s36, 7\ns_add_u32 s{40+t}, s37, s33')
        A(f's_mul_i32 s37, s36, 458752\ns_add_u32 s{56+t}, s37, s34')
    A('s_lshl_b32 s33, s31, 12\ns_mul_i32 s34, s31, 7168')
    for b in range(3):
        A(f's_add_u32 s{72+3*b}, s33, {b*STG}\ns_add_u32 s{73+3*b}, s34, {b*STG+16384}\ns_add_u32 s{74+3*b}, s34, {b*STG+16384+4096}')
    A('v_lshrrev_b32 v12, 3, v0       ; l>>3\nv_and_b32 v13, 7, v0      ; pos\nv_lshrrev_b32 v14, 4, v0    ; l>>4')
    for q in range(4):
        A(f'v_add_u32 v15, {4*(q & 1)}, v14\nv_xor_b32 v15, v15, v13\nv_lshlrev_b32 v15, 4, v15       ; chunk*16')
        A(f's_lshl_b32 s33, s31, 5\ns_add_u32 s33, s33, {8*q}\nv_add_u32 v16, s33, v12\nv_lshlrev_b32 v16, 15, v16     ; m*32768')
        A(f'v_add_u32 v15, v15, v16\nv_subrev_u32 v{2+q}, {1024*q}, v15')
    for q in range(7):
        A(f'v_add_u32 v15, {64*q}, v0\nv_mul_u32_u24 v16, 2341, v15\nv_lshrrev_b32 v16, 16, v16      ; row')
        A('v_mul_u32_u24 v17, 28, v16\nv_sub_u32 v17, v15, v17        ; pos')
        A('v_lshrrev_b32 v18, 3, v16\nv_lshrrev_b32 v19, 1, v17\nv_xor_b32 v19, v19, v18\nv_lshlrev_b32 v19, 5, v19')
        A('v_and_b32 v17, 1, v17\nv_lshl_add_u32 v19, v17, 4, v19')
        A('v_mul_u32_u24 v16, 7168, v16\nv_add_u32 v19, v19, v16')
        A(f'v_subrev_u32 v{20+q}, {1024*(q & 3)}, v19')
    def issue(t):
        b = t % 3
        nx = opt.get('nox') and t >= 3; nw = opt.get('now') and t >= 3
        A(f's_mov_b32 m0, s{72+3*b}\ns_nop 0')
        for q in range(4):
            A(f'buffer_load_dwordx4 v{2+q}, s[8:11], s{40+t} offen offset:{q*1024} lds' if not nx else 'buffer_load_dword v127, v0, s[8:11], 0 offen' if opt.get('dummy') else 's_nop 0')
        A(f's_mov_b32 m0, s{73+3*b}\ns_nop 0')
        for q in range(4): A(f'buffer_load_dwordx4 v{20+q}, s[12:15], s{56+t} offen offset:{q*1024} lds' if not nw else 's_nop 0')
        A(f's_mov_b32 m0, s{74+3*b}\ns_nop 0')
        for q in range(4, 7): A(f'buffer_load_dwordx4 v{20+q}, s[12:15], s{56+t} offen offset:{(q-4)*1024} lds' if not nw else 's_nop 0')
    issue(0); issue(1); issue(2)
    A('s_lshl_b32 s33, s25, 3\ns_lshl_b32 s34, s31, 1\ns_add_u32 s39, s33, s34     ; m0 = 8j + 2p')
    A('s_lshl_b32 s33, s39, 15\ns_lshl_b32 s34, s24, 11\ns_add_u32 s33, s33, s34')
    A('v_lshlrev_b32 v27, 5, v0       ; lane*32 B')
    A('buffer_load_dwordx4 v[28:31], v27, s[8:11], s33 offen\nbuffer_load_dwordx4 v[32:35], v27, s[8:11], s33 offen offset:16')
    A('s_add_u32 s33, s33, 32768')
    A('buffer_load_dwordx4 v[36:39], v27, s[8:11], s33 offen\nbuffer_load_dwordx4 v[40:43], v27, s[8:11], s33 offen offset:16')
    srd(A, 16, 88, 2048)
    A('buffer_load_dwordx4 v[44:47], v27, s[16:19], 0 offen\nbuffer_load_dwordx4 v[48:51], v27, s[16:19], 0 offen offset:16')
    A('v_lshrrev_b32 v52, 4, v0      ; g4\nv_and_b32 v53, 15, v0     ; sigma_l')
    A('v_lshrrev_b32 v54, 1, v52\nv_lshlrev_b32 v54, 4, v54\nv_and_b32 v55, 1, v52\nv_lshl_add_u32 v54, v55, 3, v54')
    A('v_cvt_f32_u32 v54, v54')
    for u in range(2):
        A(f's_lshl_b32 s33, s31, 5\ns_add_u32 s33, s33, {16*u}\nv_add_u32 v55, s33, v53      ; sigma')
        A('v_lshrrev_b32 v56, 1, v55      ; f1\nv_and_b32 v57, 1, v55')
        A('v_cvt_f32_u32 v56, v56\nv_cvt_f32_u32 v57, v57\nv_mul_f32 v57, 0.25, v57' .replace('0.25', f32hex(0.25)))
        A('v_cmp_eq_u32 vcc, 1, v55\nv_mov_b32 v58, 0x42800000     ; 64.0\ns_nop 0')
        A('v_cndmask_b32 v56, v56, v58, vcc\nv_cndmask_b32 v57, v57, 0, vcc' .replace('v_cndmask_b32 v57, v57, 0, vcc', 'v_mov_b32 v58, 0\nv_cndmask_b32 v57, v57, v58, vcc'))
        A(f'v_mul_f32 v56, {f32hex(1/128)}, v56      ; f1/128')
        A('v_fma_f32 v58, v56, v54, v57')
        for ks in range(4):
            vals = []
            for i8 in range(8):
                cst = 32*ks + [0, 1, 4, 5][i8 & 3] + 2*(i8 >> 2)
                A(f'v_fmamk_f32 v{96+i8}, v56, {f32hex(float(cst))}, v58')
            for i8 in range(8): A(f'v_cos_f32 v{96+i8}, v{96+i8}')
            A('s_nop 0')
            for i2 in range(4): A(f'v_cvt_pk_bf16_f32 v{64+u*16+ks*4+i2}, v{96+2*i2}, v{97+2*i2}')
    A('v_bfe_u32 v55, v0, 2, 2       ; r\nv_and_b32 v56, 3, v0      ; c')
    A('v_lshrrev_b32 v57, 1, v52\nv_lshlrev_b32 v57, 4, v57\nv_and_b32 v58, 1, v52\nv_lshl_add_u32 v57, v58, 3, v57   ; 16(g4>>1)+8(g4&1)')
    A('v_and_b32 v59, 1, v55\nv_lshrrev_b32 v60, 1, v55\nv_lshl_add_u32 v59, v60, 2, v59     ; [0,1,4,5][r]')
    A('v_add_u32 v57, v57, v59')
    A('v_lshlrev_b32 v61, 2, v58\nv_lshl_add_u32 v61, v60, 1, v61     ; f for #0 = 4 (g4&1) + 2 (r>>1)')
    A('v_lshrrev_b32 v62, 1, v56      ; c>>1\nv_and_b32 v63, 1, v56     ; c&1')
    for dt in range(4):
        for h in range(2):
            A(f'v_add_u32 v59, {2*dt}, v62\nv_add_u32 v60, {h}, v61\nv_xor_b32 v59, v59, v60\nv_lshlrev_b32 v59, 4, v59')
            A(f'v_lshl_add_u32 v59, v63, 3, v59\nv_add_u32 v60, {2*h}, v57\nv_lshl_add_u32 v{104+dt*2+h}, v60, 7, v59')
    for i in range(32): A(f'v_accvgpr_write_b32 a{64+i}, 0')
    A('s_waitcnt vmcnt(28)\ns_barrier        ; Ba')
    stamp()
    for dt in range(4):
        for ks in range(4):
            r = dt*16 + ks*4
            A(f'ds_read_b64_tr_b16 a[{r}:{r+1}], v{104+dt*2} offset:{ks*4096}')
            A(f'ds_read_b64_tr_b16 a[{r+2}:{r+3}], v{104+dt*2+1} offset:{ks*4096}')
    A('s_waitcnt lgkmcnt(0)')
    A('s_waitcnt vmcnt(17)\ns_barrier')
    stamp()
    issue(3)
    A('s_waitcnt vmcnt(17)\ns_barrier')
    stamp()
    for s in range(1, 13):
        issue(s + 3)
        A('s_waitcnt vmcnt(11)\ns_barrier')
        stamp()
    P1 = 64
    for ks in range(4):
        for u in range(2):
            for dt in range(4):
                acc = P1 + (u*4+dt)*4
                A(f'v_mfma_f32_16x16x32_bf16 a[{acc}:{acc+3}], a[{dt*16+ks*4}:{dt*16+ks*4+3}], v[{64+u*16+ks*4}:{64+u*16+ks*4+3}], a[{acc}:{acc+3}]')
    A(f's_add_u32 s16, s6, {WS_U}\ns_addc_u32 s17, s7, 0\ns_mov_b32 s18, {4 << 20}\ns_mov_b32 s19, 0x20000')
    A('v_and_b32 v55, 1, v52\nv_lshlrev_b32 v55, 4, v55\nv_lshrrev_b32 v56, 1, v52\nv_lshl_add_u32 v55, v56, 3, v55    ; d0')
    A('v_lshlrev_b32 v55, 1, v55\nv_lshl_add_u32 v55, v53, 11, v55       ; + sigma_l*2048')
    A('s_lshl_b32 s33, s24, 7\ns_lshl_b32 s34, s31, 5\ns_add_u32 s33, s33, s34\ns_lshl_b32 s33, s33, 11\ns_lshl_b32 s34, s38, 7\ns_add_u32 s33, s33, s34')
    A('s_nop 7')
    for u in range(2):
        for pr in range(2):
            ra = P1 + (u*4+2*pr)*4; T = 112 + (u*2+pr)*4
            for k in range(8): A(f'v_accvgpr_read_b32 v{96+k}, a{ra+k}')
            A(f'v_cvt_pk_bf16_f32 v{T}, v96, v97\nv_cvt_pk_bf16_f32 v{T+1}, v98, v99')
            A(f'v_cvt_pk_bf16_f32 v{T+2}, v100, v101\nv_cvt_pk_bf16_f32 v{T+3}, v102, v103')
            A('s_nop 1')
            A(f'v_permlane16_swap_b32 v{T}, v{T+2}\nv_permlane16_swap_b32 v{T+1}, v{T+3}')
    A('s_waitcnt vmcnt(0)\ns_barrier')
    stamp()
    for u in range(2):
        for pr in range(2):
            T = 112 + (u*2+pr)*4
            A(f's_add_u32 s34, s33, {u*16*2048}')
            A(f'buffer_store_dwordx4 v[{T}:{T+3}], v55, s[16:19], s34 offen offset:{pr*64}')
    A('s_barrier       ; X15')
    stamp()
    for row in range(2):
        X = 28 + row*8
        for k in range(8):
            A(f'v_lshlrev_b32 v56, 16, v{X+k}\nv_and_b32 v57, 0xffff0000, v{X+k}')
            A(f'v_lshlrev_b32 v58, 16, v{44+k}\nv_and_b32 v59, 0xffff0000, v{44+k}')
            A('v_mul_f32 v56, v56, v58\nv_mul_f32 v57, v57, v59')
            A('v_cvt_pk_bf16_f32 v56, v56, v57')
            A('v_lshlrev_b32 v58, 16, v56\nv_and_b32 v59, 0xffff0000, v56')
            if k == 0: A(f'v_add_f32 v{60+row}, v58, v59')
            else: A(f'v_add_f32 v{60+row}, v{60+row}, v58\nv_add_f32 v{60+row}, v{60+row}, v59')
    for row in range(2):
        r = 60 + row
        for sh in (1, 2, 4, 8):
            A(f's_nop 1\nv_add_f32_dpp v{r}, v{r}, v{r} row_shr:{sh} row_mask:0xf bank_mask:0xf bound_ctrl:0')
        A(f's_nop 1\nv_add_f32_dpp v{r}, v{r}, v{r} row_bcast:15 row_mask:0xa bank_mask:0xf')
        A(f's_nop 1\nv_add_f32_dpp v{r}, v{r}, v{r} row_bcast:31 row_mask:0xc bank_mask:0xf')
        A(f's_nop 1\nv_readlane_b32 s{34+row}, v{r}, 63')
    A('s_nop 3')
    A('v_mov_b32 v56, s34\nv_mov_b32 v57, s35\nv_cmp_eq_u32 vcc, 1, v0\ns_nop 1\nv_cndmask_b32 v56, v56, v57, vcc')
    A('v_cvt_pk_bf16_f32 v56, v56, v56\nv_and_b32 v56, 0xffff0000, v56')
    A(f'v_mul_f32 v57, {NL2E}, v56\nv_exp_f32 v57, v57\ns_nop 0\nv_add_f32 v57, 1.0, v57\nv_rcp_f32 v57, v57\ns_nop 0')
    A('v_cvt_pk_bf16_f32 v57, v57, v57\nv_and_b32 v57, 0xffff0000, v57       ; g (bf16)')
    A('v_sub_f32 v58, 1.0, v57\nv_cvt_pk_bf16_f32 v58, v58, v58\nv_and_b32 v58, 0xffff0000, v58    ; 1-g (bf16)')
    A(f's_add_u32 s16, s6, {WS_G}\ns_addc_u32 s17, s7, 0\ns_mov_b32 s18, {1 << 17}\ns_mov_b32 s19, 0x20000')
    A('s_lshl_b32 s33, s24, 7\ns_add_u32 s33, s33, s39\ns_lshl_b32 s33, s33, 2      ; (i*128 + m0)*4')
    A('v_lshlrev_b32 v59, 2, v0')
    A('v_cmp_gt_u32 vcc, 2, v0\ns_and_saveexec_b64 s[86:87], vcc')
    A('buffer_store_dword v58, v59, s[16:19], s33 offen')
    A(f's_add_u32 s33, s33, 8192\nbuffer_store_dword v57, v59, s[16:19], s33 offen')
    A(f's_lshl_b32 s33, s2, 4\ns_lshl_b32 s34, s31, 2\ns_add_u32 s33, s33, s34\ns_add_u32 s33, s33, {WS_FLAG - WS_G}')
    A('s_mov_b64 exec, 1\nv_mov_b32 v56, 0\nv_mov_b32 v59, 0\nbuffer_store_dword v56, v59, s[16:19], s33 offen')
    A('s_mov_b64 exec, s[86:87]')
    if opt.get('pstamp'):
        A(f's_add_u32 s8, s6, {WS_DBG + (1 << 16)}\ns_addc_u32 s9, s7, 0\ns_mov_b32 s10, 1048576\ns_mov_b32 s11, 0x20000')
        A('s_cmp_lg_u32 s20, 4\ns_cbranch_scc1 K1_end\ns_lshl_b32 s33, s2, 8\nv_lshlrev_b32 v1, 2, v0\nbuffer_store_dword v19, v1, s[8:11], s33 offen')
    A.label('K1_end')
    A('s_endpgm')
    kernel_desc(A, name, 256, 128)
```

```python
import sys, struct
sys.path.insert(0, 'dev')
from asmlib import *
from layout import *
from k1 import f32hex, WS_GV

XB = 0
XROW = 2080

def gen_k2(A, name, opt=None):
    opt = opt or {}
    kernel_header(A, name)
    A('s_cmp_ge_u32 s2, 257\ns_cbranch_scc1 K2_end')
    A('s_load_dwordx2 s[4:5], s[0:1], 8')
    A('s_load_dwordx2 s[28:29], s[0:1], 16')
    A('s_load_dwordx2 s[6:7], s[0:1], 72')
    if opt.get('stamp'): A('s_memrealtime s[90:91]')
    A('v_lshrrev_b32 v1, 6, v0\ns_nop 0\nv_readfirstlane_b32 s20, v1')
    A('v_and_b32 v0, 63, v0')
    A('s_and_b32 s21, s2, 127          ; f1')
    A('s_sub_u32 s22, 128, s21\ns_cmp_gt_u32 s21, 64\ns_cselect_b32 s22, s22, s21      ; f1p')
    A('s_cselect_b32 s23, 0xbf800000, 1.0')
    A('s_lshl_b32 s24, s22, 1\ns_mov_b32 s25, 2048')
    A('s_cmp_eq_u32 s22, 0\ns_cbranch_scc1 K2_real')
    A('s_cmp_eq_u32 s22, 64\ns_cbranch_scc0 K2_cplx\ns_mov_b32 s24, 1')
    A.label('K2_real')
    A('s_mov_b32 s25, 0\ns_mov_b32 s23, 0')
    A.label('K2_cplx')
    A('s_waitcnt lgkmcnt(0)')
    A(f's_add_u32 s8, s6, {WS_U}\ns_addc_u32 s9, s7, 0\ns_mov_b32 s10, {4 << 20}\ns_mov_b32 s11, 0x20000')
    A('v_lshrrev_b32 v2, 5, v0       ; c\nv_and_b32 v3, 31, v0      ; pos')
    A('v_mul_lo_u32 v4, v2, s25       ; c*(sig_im-sig_re)*2048')
    for qq in range(4):
        A(f'v_add_u32 v5, {2*qq}, v2\nv_lshrrev_b32 v6, 1, v3\nv_xor_b32 v6, v6, v5\nv_lshlrev_b32 v6, 5, v6')
        A('v_and_b32 v7, 1, v3\nv_lshl_add_u32 v6, v7, 4, v6\nv_add_u32 v6, v6, v4')
        A(f'v_subrev_u32 v{8+qq}, {1024*qq}, v6')
    A('s_lshl_b32 s26, s24, 11\ns_lshl_b32 s27, s20, 9\ns_add_u32 s26, s26, s27')
    A('s_lshl_b32 s27, s20, 14')
    for qb in range(4):
        A(f's_add_u32 m0, s27, {qb*4096}')
        for qq in range(4):
            q = qb*4 + qq
            A(f's_add_u32 s30, s26, {q*262144}')
            A(f'buffer_load_dwordx4 v{8+qq}, s[8:11], s30 offen offset:{qq*1024} lds')
    WR, WI, EX = 16, 32, 48
    for k in range(36): A(f'v_mov_b32 v{WR+k}, 0')
    srd(A, 12, 4, 2048*513*2); srd(A, 16, 28, 2048*513*2)
    A('s_lshl_b32 s30, s20, 9\ns_add_u32 s31, s2, s30       ; f = g + 512 j')
    A('s_sub_u32 s32, 2048, s31\ns_and_b32 s32, s32, 2047    ; fm')
    A('s_mul_i32 s33, s31, 1026\ns_mul_i32 s34, s32, 1026')
    A('v_and_b32 v2, 31, v0      ; k1 / n\nv_lshrrev_b32 v3, 5, v0     ; h')
    A('v_lshl_add_u32 v4, v3, 7, v2\nv_lshlrev_b32 v5, 1, v4         ; direct: 2 (k1 + 128 h)')
    A('v_sub_u32 v6, 160, v4\nv_lshlrev_b32 v6, 1, v6       ; mirror: 2 (160 - k1 - 128 h)')
    A('v_mov_b32 v7, 0')
    for rho in range(16):
        kk = 8*(rho >> 2) + (rho & 3)
        if rho < 8:
            A(f'buffer_load_short_d16_hi v{WR+rho}, v5, s[12:15], s33 offen offset:{64*kk}')
            A(f'buffer_load_short_d16_hi v{WI+rho}, v5, s[16:19], s33 offen offset:{64*kk}')
        else:
            A(f'buffer_load_short_d16_hi v{WR+rho}, v6, s[12:15], s34 offen offset:{64*(27-kk)}')
            A(f'buffer_load_short_d16_hi v{WI+rho}, v6, s[16:19], s34 offen offset:{64*(27-kk)}')
    A(f'buffer_load_short_d16_hi v{EX}, v7, s[12:15], s34 offen\nbuffer_load_short_d16_hi v{EX+1}, v7, s[16:19], s34 offen')
    A(f'buffer_load_short_d16_hi v{EX+2}, v7, s[12:15], s33 offen offset:1024\nbuffer_load_short_d16_hi v{EX+3}, v7, s[16:19], s33 offen offset:1024')
    FR, FI, FN = 52, 60, 68
    TR, TI = 76, 92
    CM = 108
    T = 112
    A(f'v_cvt_f32_u32 v{T}, v2\nv_cvt_f32_u32 v{T+1}, v3')
    A(f'v_mul_f32 v{T+2}, {f32hex(1/32)}, v{T}       ; n/32')
    A(f'v_mul_f32 v{T+3}, 4.0, v{T+1}\nv_mul_f32 v{T+3}, v{T+3}, v{T+2}      ; A0 = 4h*n/32')
    for dst, ph in ((FR, 0.0), (FI, 0.25), (FN, -0.25)):
        A(f'v_add_f32 v{T+4}, {f32hex(ph)}, v{T+3}')
        for ks in range(2):
            for i in range(8):
                pc = 16*ks + 8*(i >> 2) + (i & 3)
                A(f'v_fmamk_f32 v{T+8+i}, v{T+2}, {f32hex(float(pc))}, v{T+4}')
            for i in range(8): A(f'v_cos_f32 v{T+8+i}, v{T+8+i}')
            A('s_nop 0')
            for i in range(4): A(f'v_cvt_pk_bf16_f32 v{dst+ks*4+i}, v{T+8+2*i}, v{T+9+2*i}')
    A(f'v_mul_f32 v{T+2}, {f32hex(1/1024)}, v{T}       ; n/1024')
    A(f'v_mul_f32 v{T+3}, 4.0, v{T+1}\nv_mul_f32 v{T+3}, v{T+3}, v{T+2}')
    A(f'v_add_f32 v{T+4}, {f32hex(0.25)}, v{T+3}')
    for rho in range(16):
        rc = 8*(rho >> 2) + (rho & 3)
        A(f'v_fmamk_f32 v{TR+rho}, v{T+2}, {f32hex(float(rc))}, v{T+3}')
        A(f'v_fmamk_f32 v{TI+rho}, v{T+2}, {f32hex(float(rc))}, v{T+4}')
    for rho in range(16): A(f'v_cos_f32 v{TR+rho}, v{TR+rho}\nv_cos_f32 v{TI+rho}, v{TI+rho}')
    A(f'v_and_b32 v{T}, 15, v0        ; col\nv_lshrrev_b32 v{T+1}, 4, v0      ; g4')
    A(f'v_lshrrev_b32 v{T+2}, 1, v{T}\nv_and_b32 v{T+2}, 3, v{T+2}\nv_lshlrev_b32 v{T+2}, 9, v{T+2}\nv_add_u32 v{T+2}, s2, v{T+2}     ; f = g + 512 j')
    A(f'v_and_b32 v{T+3}, 1, v{T}\nv_cvt_f32_u32 v{T+3}, v{T+3}\nv_mul_f32 v{T+3}, {f32hex(0.25)}, v{T+3}     ; 0.25 c\'')
    A(f'v_cmp_gt_u32 vcc, 8, v{T}\nv_mov_b32 v{T+4}, 0\nv_mov_b32 v{T+5}, 1.0\nv_mov_b32 v{T+6}, s23')
    A(f'v_cndmask_b32 v{T+5}, v{T+4}, v{T+5}, vcc\nv_cndmask_b32 v{T+6}, v{T+4}, v{T+6}, vcc')
    A(f'v_lshlrev_b32 v{T+7}, 1, v{T+1}       ; 2 g4')
    for i in range(8):
        rc = 8*(i >> 2) + ((i & 3) >> 1); c = i & 1
        A(f'v_add_u32 v{T+8+i}, {rc}, v{T+7}\nv_mul_u32_u24 v{T+8+i}, v{T+8+i}, v{T+2}\nv_and_b32 v{T+8+i}, 2047, v{T+8+i}')
        A(f'v_cvt_f32_u32 v{T+8+i}, v{T+8+i}\nv_fmamk_f32 v{T+8+i}, v{T+8+i}, {f32hex(1/2048)}, v{T+3}')
        if c: A(f'v_add_f32 v{T+8+i}, {f32hex(-0.25)}, v{T+8+i}')
    for i in range(8): A(f'v_cos_f32 v{T+8+i}, v{T+8+i}')
    A('s_nop 0')
    for i in range(8): A(f'v_mul_f32 v{T+8+i}, v{T+8+i}, v{T+5+(i & 1)}')
    for i in range(4): A(f'v_cvt_pk_bf16_f32 v{CM+i}, v{T+8+2*i}, v{T+9+2*i}')
    EXTV = 160
    A('s_cmp_ge_u32 s2, 256\ns_cbranch_scc1 K2_noext')
    A('s_lshr_b32 s36, s2, 4      ; tile i\ns_and_b32 s37, s2, 15\ns_lshl_b32 s37, s37, 3      ; m0')
    A(f's_add_u32 s40, s6, {WS_GV}\ns_addc_u32 s41, s7, 0\ns_mov_b32 s42, 8192\ns_mov_b32 s43, 0x20000')
    A(f'v_and_b32 v{T}, 7, v0\nv_add_u32 v{T}, s37, v{T}       ; m')
    A(f's_lshl_b32 s38, s36, 9\nv_lshlrev_b32 v{T+1}, 2, v{T}\nbuffer_load_dword v{T+2}, v{T+1}, s[40:43], s38 offen     ; g[token]')
    A(f's_lshr_b32 s38, s36, 2\nv_lshlrev_b32 v{T+3}, 2, v{T}\nv_add_u32 v{T+3}, s38, v{T+3}      ; m\' = (i>>2) + 4 m')
    A(f'v_bfe_u32 v{T+4}, v0, 3, 2       ; g4\nv_lshrrev_b32 v{T+5}, 5, v0\ns_lshl_b32 s38, s20, 1\nv_add_u32 v{T+5}, s38, v{T+5}      ; F\'hi (0..7)')
    A(f'v_lshlrev_b32 v{T+6}, 5, v{T+5}\nv_lshl_add_u32 v{T+6}, v{T+4}, 2, v{T+6}')
    for half in range(2):
        for i in range(8):
            sc = 256*half + 16*(i >> 2) + (i & 3)
            r = EXTV + half*8 + i
            A(f'v_add_u32 v{r}, {sc}, v{T+6}       ; slot')
            A(f'v_lshrrev_b32 v{T+7}, 1, v{r}\nv_and_b32 v{T+8}, 1, v{r}')
            if half == 0 and i == 1:
                A(f'v_cmp_eq_u32 vcc, 1, v{r}\nv_mov_b32 v{T+9}, 256\nv_mov_b32 v{T+10}, 0')
                A(f'v_cndmask_b32 v{T+7}, v{T+7}, v{T+9}, vcc\nv_cndmask_b32 v{T+8}, v{T+8}, v{T+10}, vcc')
            A(f'v_mul_u32_u24 v{T+7}, v{T+7}, v{T+3}\nv_lshl_add_u32 v{T+7}, v{T+8}, 7, v{T+7}\nv_and_b32 v{T+7}, 511, v{T+7}')
            A(f'v_cvt_f32_u32 v{T+7}, v{T+7}\nv_mul_f32 v{r}, {f32hex(1/512)}, v{T+7}')
            A(f'v_cos_f32 v{r}, v{r}')
    A('s_waitcnt vmcnt(0)')
    for k in range(16): A(f'v_mul_f32 v{EXTV+k}, v{EXTV+k}, v{T+2}')
    for half in range(2):
        for i in range(4): A(f'v_cvt_pk_bf16_f32 v{EXTV+16+half*4+i}, v{EXTV+half*8+2*i}, v{EXTV+half*8+2*i+1}')
    A(f's_add_u32 s40, s6, {WS_H}\ns_addc_u32 s41, s7, 0\ns_mov_b32 s42, {16 << 20}\ns_mov_b32 s43, 0x20000')
    A(f'v_lshlrev_b32 v{T+7}, 13, v{T+5}\nv_lshrrev_b32 v{T+8}, 4, v{T}\nv_lshl_add_u32 v{T+7}, v{T+8}, 10, v{T+7}')
    A(f'v_and_b32 v{T+8}, 15, v{T}\nv_lshl_add_u32 v{T+8}, v{T+4}, 4, v{T+8}\nv_lshl_add_u32 v{T+7}, v{T+8}, 4, v{T+7}')
    A(f's_lshl_b32 s38, s36, 20\ns_add_u32 s38, s38, {112*8192}')
    A(f'buffer_store_dwordx4 v[{EXTV+16}:{EXTV+19}], v{T+7}, s[40:43], s38 offen')
    A(f's_add_u32 s38, s38, {8*8192}')
    A(f'buffer_store_dwordx4 v[{EXTV+20}:{EXTV+23}], v{T+7}, s[40:43], s38 offen')
    A.label('K2_noext')
    A('s_waitcnt vmcnt(0)')
    if opt.get('stamp'): A('s_memrealtime s[92:93]')
    AD = 128
    A(f'v_lshrrev_b32 v{T}, 4, v0\nv_bfe_u32 v{T+1}, v0, 2, 2\nv_and_b32 v{T+2}, 3, v0')
    A(f'v_lshl_add_u32 v{T+3}, v{T}, 2, v{T+1}      ; row = 4 g4 + r4\nv_and_b32 v{T+4}, 7, v{T+3}')
    A(f's_lshl_b32 s27, s20, 14\nv_lshlrev_b32 v{T+5}, 9, v{T+3}\nv_lshl_add_u32 v{T+5}, v{T+2}, 3, v{T+5}\nv_add_u32 v{T+5}, s27, v{T+5}')
    for b in range(8):
        A(f'v_xor_b32 v{T+6}, {b}, v{T+4}\nv_lshl_add_u32 v{AD+b}, v{T+6}, 5, v{T+5}')
    A(f'v_and_b32 v{T+6}, 15, v0\nv_mul_u32_u24 v{T+6}, {XROW}, v{T+6}\nv_lshl_add_u32 v{T+6}, v{T}, 3, v{T+6}')
    A(f's_lshl_b32 s27, s20, 9\ns_add_u32 s27, s27, {XB}\nv_add_u32 v{T+7}, s27, v{T+6}')
    UA = 136
    for dt in range(16):
        r = UA + dt*4
        A(f'ds_read_b64_tr_b16 v[{r}:{r+1}], v{AD+(dt & 7)} offset:{(dt >> 3)*256}')
        A(f'ds_read_b64_tr_b16 v[{r+2}:{r+3}], v{AD+(dt & 7)} offset:{(dt >> 3)*256 + 8192}')
    A('s_waitcnt lgkmcnt(0)\ns_barrier')
    DA = 200
    A('s_mov_b64 s[46:47], exec')
    for blk in range(4):
        for t in range(4):
            dt = blk*4 + t; r = UA + dt*4; d = DA + t*4
            A(f'v_mfma_f32_16x16x32_bf16 v[{d}:{d+3}], v[{r}:{r+3}], v[{CM}:{CM+3}], 0')
        A('s_nop 7')
        for t in range(4):
            d = DA + t*4
            A(f'v_cvt_pk_bf16_f32 v{d}, v{d}, v{d+1}\nv_cvt_pk_bf16_f32 v{d+1}, v{d+2}, v{d+3}')
        A(f's_mov_b64 exec, 0x00ff00ff00ff00ff' if False else 's_mov_b32 exec_lo, 0x00ff00ff\ns_mov_b32 exec_hi, 0x00ff00ff')
        for t in range(4):
            dt = blk*4 + t; d = DA + t*4
            A(f'ds_write_b64 v{T+7}, v[{d}:{d+1}] offset:{dt*32}')
        A('s_mov_b64 exec, s[46:47]')
    A('s_waitcnt lgkmcnt(0)\ns_barrier')
    DR, DI = 136, 144
    A(f'v_lshrrev_b32 v{T}, 4, v0      ; G\nv_lshrrev_b32 v{T+1}, 1, v{T}     ; h\nv_and_b32 v{T+2}, 1, v{T}      ; half')
    A(f'v_bfe_u32 v{T+3}, v0, 2, 2\nv_and_b32 v{T+4}, 3, v0')
    A(f'v_lshl_add_u32 v{T+3}, v{T+1}, 2, v{T+3}      ; 4h + r4\nv_lshlrev_b32 v{T+3}, 6, v{T+3}')
    A(f'v_lshl_add_u32 v{T+3}, v{T+2}, 5, v{T+3}\nv_lshl_add_u32 v{T+3}, v{T+4}, 3, v{T+3}')
    A(f's_mul_i32 s27, s20, {2*XROW}\ns_add_u32 s27, s27, {XB}\nv_add_u32 v{T+3}, s27, v{T+3}')
    for c, D in ((0, DR), (1, DI)):
        for ks in range(2):
            A(f'ds_read_b64_tr_b16 v[{D+ks*4}:{D+ks*4+1}], v{T+3} offset:{c*XROW + ks*1024}')
            A(f'ds_read_b64_tr_b16 v[{D+ks*4+2}:{D+ks*4+3}], v{T+3} offset:{c*XROW + ks*1024 + 512}')
    A('s_mov_b64 exec, 1')
    for rho, e in ((0, EX), (8, EX+2)):
        A(f'v_add_f32 v{WR+rho}, v{WR+rho}, v{e}\nv_sub_f32 v{WI+rho}, v{WI+rho}, v{e+1}')
        A(f'v_mul_f32 v{WR+rho}, 0.5, v{WR+rho}\nv_mul_f32 v{WI+rho}, 0.5, v{WI+rho}')
    A('s_mov_b64 exec, s[46:47]')
    A('s_waitcnt lgkmcnt(0)')
    CR, CI = 152, 168
    def stage(data_is_A, inv):
        def mm(acc, d, f, first):
            for ks in range(2):
                src = '0' if (first and ks == 0) else f'v[{acc}:{acc+15}]'
                if data_is_A: A(f'v_mfma_f32_32x32x16_bf16 v[{acc}:{acc+15}], v[{d+ks*4}:{d+ks*4+3}], v[{f+ks*4}:{f+ks*4+3}], {src}')
                else: A(f'v_mfma_f32_32x32x16_bf16 v[{acc}:{acc+15}], v[{f+ks*4}:{f+ks*4+3}], v[{d+ks*4}:{d+ks*4+3}], {src}')
        mm(CR, DR, FR, True); mm(CI, DI, FR, True)
        if not inv: mm(CR, DI, FN, False); mm(CI, DR, FI, False)
        else: mm(CR, DI, FI, False); mm(CI, DR, FN, False)
        A('s_nop 15')
    def cmul_pack(wr, wi, conj_lo, conj_hi):
        P = 184
        for rho in range(16):
            cj = conj_lo if rho < 8 else conj_hi
            A(f'v_mul_f32 v{P+rho}, v{CR+rho}, v{wr+rho}')
            A(f'v_mul_f32 v{P+16+rho}, v{CI+rho}, v{wr+rho}')
            if not cj:
                A(f'v_fma_f32 v{P+rho}, -v{CI+rho}, v{wi+rho}, v{P+rho}')
                A(f'v_fma_f32 v{P+16+rho}, v{CR+rho}, v{wi+rho}, v{P+16+rho}')
            else:
                A(f'v_fma_f32 v{P+rho}, v{CI+rho}, v{wi+rho}, v{P+rho}')
                A(f'v_fma_f32 v{P+16+rho}, -v{CR+rho}, v{wi+rho}, v{P+16+rho}')
        for i in range(8):
            A(f'v_cvt_pk_bf16_f32 v{DR+i}, v{P+2*i}, v{P+2*i+1}')
            A(f'v_cvt_pk_bf16_f32 v{DI+i}, v{P+16+2*i}, v{P+16+2*i+1}')
        A('s_nop 1')
    stage(True, False)
    cmul_pack(TR, TI, False, False)
    stage(False, False)
    cmul_pack(WR, WI, False, True)
    stage(True, True)
    cmul_pack(TR, TI, True, True)
    stage(True, True)
    if opt.get('stamp'): A('s_memrealtime s[94:95]')
    A('s_barrier')
    A(f'v_and_b32 v{T}, 31, v0\nv_lshrrev_b32 v{T+1}, 5, v0\nv_and_b32 v{T+2}, 7, v{T}\nv_xor_b32 v{T+2}, v{T+2}, v{T+1}')
    A(f'v_lshlrev_b32 v{T+2}, 4, v{T+2}\nv_lshl_add_u32 v{T+2}, v{T}, 7, v{T+2}')
    A(f's_lshl_b32 s27, s20, 13\nv_add_u32 v{T+2}, s27, v{T+2}')
    for q in range(4):
        A(f'v_xor_b32 v{T+3+q}, {q*32}, v{T+2}')
    for q in range(4):
        A(f'ds_write_b128 v{T+3+q}, v[{CR+4*q}:{CR+4*q+3}]')
        A(f'ds_write_b128 v{T+3+q}, v[{CI+4*q}:{CI+4*q+3}] offset:4096')
    A(f's_mov_b32 s27, {f32hex(2.0**-20)}\ns_and_b32 s30, s2, 255\ns_cmp_eq_u32 s30, 0\ns_cselect_b32 s27, {f32hex(2.0**-21)}, s27')
    TW = 120
    for r in range(1, 4):
        A(f's_mul_i32 s30, s2, {r}\ns_and_b32 s30, s30, 2047\nv_cvt_f32_u32 v{TW+2*(r-1)}, s30')
        A(f'v_mul_f32 v{TW+2*(r-1)}, {f32hex(1/2048)}, v{TW+2*(r-1)}\nv_add_f32 v{TW+2*(r-1)+1}, {f32hex(-0.25)}, v{TW+2*(r-1)}')
    for k in range(6): A(f'v_cos_f32 v{TW+k}, v{TW+k}')
    A('s_nop 0')
    for k in range(6): A(f'v_mul_f32 v{TW+k}, s27, v{TW+k}')
    A('s_waitcnt lgkmcnt(0)\ns_barrier')
    A(f'v_lshrrev_b32 v{T}, 3, v0\nv_and_b32 v{T+1}, 7, v0\nv_xor_b32 v{T+1}, v{T+1}, v{T}\nv_lshlrev_b32 v{T+1}, 4, v{T+1}')
    A(f'v_lshl_add_u32 v{T+1}, v{T}, 7, v{T+1}\ns_lshl_b32 s30, s20, 10\nv_add_u32 v{T+1}, s30, v{T+1}')
    V = 136
    for j in range(4):
        for c in range(2):
            A(f'ds_read_b128 v[{V+(j*2+c)*4}:{V+(j*2+c)*4+3}], v{T+1} offset:{(j*2+c)*4096}')
    A(f's_add_u32 s8, s6, {WS_T}\ns_addc_u32 s9, s7, 0\ns_mov_b32 s10, {4 << 20}\ns_mov_b32 s11, 0x20000')
    A('s_lshl_b32 s30, s2, 1\ns_cmp_eq_u32 s2, 256\ns_cselect_b32 s30, 1, s30')
    A('s_lshl_b32 s30, s30, 11\ns_lshl_b32 s31, s20, 9\ns_add_u32 s30, s30, s31')
    A(f'v_lshlrev_b32 v{T+2}, 3, v0      ; lane*4 d*2B')
    A('s_waitcnt lgkmcnt(0)')
    S = 168
    O = 200
    for x in range(4):
        v = lambda j, c: V + (j*2+c)*4 + x
        A(f'v_add_f32 v{O}, v{v(0,0)}, v{v(2,0)}\nv_add_f32 v{O+1}, v{v(0,1)}, v{v(2,1)}')
        A(f'v_sub_f32 v{O+2}, v{v(0,0)}, v{v(2,0)}\nv_sub_f32 v{O+3}, v{v(0,1)}, v{v(2,1)}')
        A(f'v_add_f32 v{O+4}, v{v(1,0)}, v{v(3,0)}\nv_add_f32 v{O+5}, v{v(1,1)}, v{v(3,1)}')
        A(f'v_sub_f32 v{O+6}, v{v(1,0)}, v{v(3,0)}\nv_sub_f32 v{O+7}, v{v(1,1)}, v{v(3,1)}')
        s = lambda r, c: S + (r*2+c)*4 + x
        A(f'v_add_f32 v{s(0,0)}, v{O}, v{O+4}\nv_add_f32 v{s(0,1)}, v{O+1}, v{O+5}')
        A(f'v_mul_f32 v{s(0,0)}, s27, v{s(0,0)}\nv_mul_f32 v{s(0,1)}, s27, v{s(0,1)}')
        for r, (re_expr, im_expr) in ((1, ((O+2, '-', O+7), (O+3, '+', O+6))), (2, ((O, '-', O+4), (O+1, '-', O+5))), (3, ((O+2, '+', O+7), (O+3, '-', O+6)))):
            op = lambda sg: 'v_add_f32' if sg == '+' else 'v_sub_f32'
            A(f'{op(re_expr[1])} v{O+8}, v{re_expr[0]}, v{re_expr[2]}\n{op(im_expr[1])} v{O+9}, v{im_expr[0]}, v{im_expr[2]}')
            tr, ti = TW + 2*(r-1), TW + 2*(r-1) + 1
            A(f'v_mul_f32 v{s(r,0)}, v{O+8}, v{tr}\nv_mul_f32 v{s(r,1)}, v{O+9}, v{tr}')
            A(f'v_fma_f32 v{s(r,0)}, -v{O+9}, v{ti}, v{s(r,0)}\nv_fma_f32 v{s(r,1)}, v{O+8}, v{ti}, v{s(r,1)}')
    for r in range(4):
        for c in range(2):
            b = S + (r*2+c)*4
            A(f'v_cvt_pk_bf16_f32 v{b}, v{b}, v{b+1}\nv_cvt_pk_bf16_f32 v{b+1}, v{b+2}, v{b+3}')
    for r in range(4):
        b = S + (r*2)*4
        A(f's_add_u32 s31, s30, {r << 20}')
        A(f'buffer_store_dwordx2 v[{b}:{b+1}], v{T+2}, s[8:11], s31 offen')
    A('s_and_b32 s31, s2, 255\ns_cmp_eq_u32 s31, 0\ns_cbranch_scc1 K2_fin')
    for r in range(4):
        b = S + (r*2+1)*4
        A(f's_add_u32 s31, s30, {(r << 20) + 2048}')
        A(f'buffer_store_dwordx2 v[{b}:{b+1}], v{T+2}, s[8:11], s31 offen')
    A.label('K2_fin')
    if opt.get('stamp'):
        A('s_waitcnt vmcnt(0)\ns_memrealtime s[96:97]\ns_waitcnt lgkmcnt(0)')
        A(f's_add_u32 s8, s6, {WS_DBG + (3 << 16)}\ns_addc_u32 s9, s7, 0\ns_mov_b32 s10, 65536\ns_mov_b32 s11, 0x20000')
        A('s_cmp_lg_u32 s20, 0\ns_cbranch_scc1 K2_end')
        A('s_lshl_b32 s33, s2, 5')
        A(f'v_cmp_eq_u32 vcc, 0, v0\ns_and_saveexec_b64 s[46:47], vcc\ns_cbranch_execz K2_end')
        for k, sreg in enumerate([90, 92, 94, 96]):
            A(f'v_mov_b32 v1, s{sreg}\nv_mov_b32 v2, s33\nbuffer_store_dword v1, v2, s[8:11], 0 offen offset:{4*k}')
    A.label('K2_end')
    A('s_endpgm')
    kernel_desc(A, name, 224, 224)
LDS_K2 = 65536
```

```python
import sys
sys.path.insert(0, 'dev')
from asmlib import *
from layout import *

def gen_k3(A, name, opt=None):
    opt = opt or {}
    STG = 32768
    NB = 4
    kernel_header(A, name)
    A('s_cmp_ge_u32 s2, 256\ns_cbranch_scc1 K3_end')
    A('s_load_dwordx2 s[4:5], s[0:1], 40')
    A('s_load_dwordx2 s[6:7], s[0:1], 72')
    A('s_load_dwordx2 s[28:29], s[0:1], 56')
    if opt.get('stamp'): A('s_memrealtime s[60:61]')
    A('v_lshrrev_b32 v1, 6, v0\ns_nop 0\nv_readfirstlane_b32 s20, v1')
    A('v_and_b32 v202, 63, v0         ; lane')
    A('s_and_b32 s21, s2, 7\ns_lshr_b32 s22, s2, 3')
    A('s_lshr_b32 s23, s21, 2          ; kh')
    A('s_and_b32 s24, s21, 3           ; mq')
    A('s_and_b32 s25, s22, 3\ns_lshl_b32 s24, s24, 2\ns_add_u32 s24, s24, s25    ; M tile i')
    A('s_lshr_b32 s25, s22, 2')
    A('s_waitcnt lgkmcnt(0)')
    A('s_cmp_ge_u32 s20, 4\ns_cbranch_scc1 K3_producer')

    ACC = 0
    FS = [64, 96, 128, 160]
    VA = [192, 197]
    LANE = 202; OMG = 204
    A('s_and_b32 s31, s20, 1    ; dh\ns_lshr_b32 s32, s20, 1   ; th')
    A(f's_add_u32 s8, s6, {WS_G}\ns_addc_u32 s9, s7, 0\ns_mov_b32 s10, 8192\ns_mov_b32 s11, 0x20000')
    A('s_lshl_b32 s33, s24, 7\ns_lshl_b32 s36, s32, 6\ns_add_u32 s33, s33, s36\ns_lshl_b32 s33, s33, 2')
    A(f'v_and_b32 v2, 15, v{LANE}\nv_lshlrev_b32 v3, 2, v2')
    for b in range(4):
        A(f'buffer_load_dword v{OMG+b}, v3, s[8:11], s33 offen offset:{b*64}')
    A(f'v_lshrrev_b32 v1, 4, v{LANE}       ; g4')
    A(f'v_bfe_u32 v2, v{LANE}, 2, 2        ; r')
    A(f'v_and_b32 v3, 3, v{LANE}           ; c')
    A('v_lshl_add_u32 v14, v1, 2, v2 ; row = 4 g4 + r')
    A('v_and_b32 v15, 7, v14         ; row & 7')
    for a in range(4):
        A(f's_lshl_b32 s33, s31, 2\ns_add_u32 s33, s33, {a}     ; blk')
        A(f'v_xor_b32 v16, s33, v15\nv_lshlrev_b32 v16, 5, v16')
        A(f'v_lshl_add_u32 v16, v14, 8, v16\nv_lshl_add_u32 v16, v3, 3, v16')
        A(f'v_add_u32 v{VA[0]+a}, 16384, v16')
        A(f'v_add_u32 v{VA[1]+a}, {16384+2*STG}, v16')
    A(f's_lshl_b32 s33, s32, 12\nv_lshlrev_b32 v16, 4, v{LANE}\nv_add_u32 v16, s33, v16')
    A(f'v_mov_b32 v{VA[0]+4}, v16\nv_add_u32 v{VA[1]+4}, {2*STG}, v16')
    for i in range(64):
        A(f'v_mov_b32 v{ACC+i}, 0')
    def reads(buf, ks, fs):
        va = VA[buf >> 1]; base = (buf & 1) * STG + ks * 8192
        L = []
        for a in range(4):
            L.append(f'ds_read_b64_tr_b16 v[{fs+4*a}:{fs+4*a+1}], v{va+a} offset:{base}')
            L.append(f'ds_read_b64_tr_b16 v[{fs+4*a+2}:{fs+4*a+3}], v{va+a} offset:{base+4096}')
            L.append(f'ds_read_b128 v[{fs+16+4*a}:{fs+16+4*a+3}], v{va+4} offset:{base+a*1024}')
        return L
    def mfmas(fs):
        L = []
        for a in range(4):
            for b in range(4):
                acc = ACC + (a*4+b)*4
                L.append(f'v_mfma_f32_16x16x32_bf16 v[{acc}:{acc+3}], v[{fs+4*a}:{fs+4*a+3}], v[{fs+16+4*b}:{fs+16+4*b+3}], v[{acc}:{acc+3}]')
        return L
    A('s_barrier')
    for x in reads(0, 0, FS[0]) + reads(0, 1, FS[1]): A(x)
    A('s_waitcnt lgkmcnt(0)')
    A('s_barrier')
    if opt.get('stamp'): A('s_memrealtime s[62:63]\ns_memtime s[70:71]')
    A('s_mov_b32 s35, 8')
    A('.p2align 6')
    A.label('K3_c_loop')
    for buf in range(NB):
        cur = FS[(buf & 1)*2:(buf & 1)*2+2]
        nxt = FS[((buf+1) & 1)*2:((buf+1) & 1)*2+2]
        m0, m1 = mfmas(cur[0]), mfmas(cur[1])
        mm = []
        for x, y in zip(m0, m1): mm += [x, y]
        rr = reads((buf+1) % NB, 0, nxt[0]) + reads((buf+1) % NB, 1, nxt[1])
        for x in interleave(mm, rr, start=0, every=1, per=1): A(x)
        A('s_waitcnt lgkmcnt(0)')
        A('s_barrier')
    A('s_sub_u32 s35, s35, 1\ns_cmp_eq_u32 s35, 1\ns_cbranch_scc1 K3_scale')
    A('s_cmp_lg_u32 s35, 0\ns_cbranch_scc1 K3_c_loop')
    A('s_branch K3_c_done')
    A.label('K3_scale')
    A('s_waitcnt vmcnt(0)\ns_nop 7')
    for a in range(4):
        for b in range(4):
            for j in range(4):
                r = ACC + (a*4+b)*4 + j
                A(f'v_mul_f32 v{r}, v{r}, v{OMG+b}')
    A('s_nop 1')
    A('s_branch K3_c_loop')
    A.label('K3_c_done')
    if opt.get('stamp'): A('s_memrealtime s[64:65]\ns_memtime s[72:73]')
    A('s_lshl_b32 s33, s24, 3\ns_add_u32 s33, s33, s25')
    A(f's_add_u32 s8, s6, {WS_X}\ns_addc_u32 s9, s7, 0\ns_mov_b32 s10, {8 << 20}\ns_mov_b32 s11, 0x20000')
    A(f's_add_u32 s12, s6, {WS_FLAG}\ns_addc_u32 s13, s7, 0\ns_mov_b32 s14, 4096\ns_mov_b32 s15, 0x20000')
    A('s_lshl_b32 s36, s33, 1\ns_add_u32 s37, s36, s23\ns_lshl_b32 s37, s37, 2\ns_add_u32 s37, s37, s20')
    A('s_xor_b32 s38, s23, 1\ns_add_u32 s38, s36, s38\ns_lshl_b32 s38, s38, 2\ns_add_u32 s38, s38, s20')
    A('s_lshl_b32 s39, s37, 13\ns_lshl_b32 s40, s38, 13')
    A('s_lshl_b32 s41, s37, 2\ns_lshl_b32 s42, s38, 2')
    A(f'v_lshlrev_b32 v120, 4, v{LANE}')
    A('s_nop 7')
    RX = 64
    for kh in range(2):
        if kh == 0: A('s_cmp_lg_u32 s23, 0\ns_cbranch_scc1 K3_x1')
        else: A.label('K3_x1')
        keep = [2*kh, 2*kh+1]; send = [2*(1-kh), 2*(1-kh)+1]
        for bb, b in enumerate(send):
            for a in range(4):
                r = ACC + (a*4+b)*4
                A(f'buffer_store_dwordx4 v[{r}:{r+3}], v120, s[8:11], s39 offen offset:{(bb*4+a)*1024 % 4096} sc0 sc1' if bb == 0 else
                  f'buffer_store_dwordx4 v[{r}:{r+3}], v121, s[8:11], s39 offen offset:{(bb*4+a)*1024 % 4096} sc0 sc1')
            if bb == 0: A('v_add_u32 v121, 4096, v120')
        A('s_waitcnt vmcnt(0)')
        if opt.get('stamp'): A('s_memrealtime s[74:75]')
        A('v_mov_b32 v122, 1\nv_mov_b32 v123, s41')
        A(f'v_cmp_eq_u32 vcc, 0, v{LANE}\ns_and_saveexec_b64 s[44:45], vcc')
        A('buffer_store_dword v122, v123, s[12:15], 0 offen sc0 sc1')
        A('s_mov_b64 exec, s[44:45]')
        lp = f'K3_poll{kh}'
        A('v_mov_b32 v123, s42\ns_mov_b32 s48, 0')
        A.label(lp)
        A('buffer_load_dword v122, v123, s[12:15], 0 offen sc0 sc1\ns_waitcnt vmcnt(0)')
        A('v_readfirstlane_b32 s43, v122\ns_cmp_eq_u32 s43, 1')
        A(f's_cbranch_scc1 {lp}_ok\ns_add_u32 s48, s48, 1\ns_cmp_lt_u32 s48, 0x40000\ns_cbranch_scc0 {lp}_ok\ns_sleep 1\ns_branch {lp}')
        A.label(lp + '_ok')
        if opt.get('stamp'): A('s_memrealtime s[66:67]')
        for bb in range(2):
            for a in range(4):
                r = RX + (bb*4+a)*4
                A(f'buffer_load_dwordx4 v[{r}:{r+3}], v{120+bb}, s[8:11], s40 offen offset:{a*1024} sc0 sc1')
        A(f'v_and_b32 v124, 15, v{LANE}           ; t')
        A(f'v_lshrrev_b32 v125, 4, v{LANE}        ; g4')
        A('s_lshl_b32 s33, s32, 6\nv_add_u32 v124, s33, v124   ; m = 64 th + t (+16 b)')
        A('v_lshlrev_b32 v124, 4, v124\nv_add_u32 v124, s24, v124   ; s = i + 16 m')
        A('v_lshlrev_b32 v124, 11, v124      ; * 2048 B')
        A('v_and_b32 v126, 1, v125\nv_lshlrev_b32 v126, 4, v126\nv_lshrrev_b32 v127, 1, v125\nv_lshl_add_u32 v126, v127, 3, v126')
        A('s_lshl_b32 s33, s25, 7\ns_lshl_b32 s36, s31, 6\ns_add_u32 s33, s33, s36\nv_add_u32 v126, s33, v126')
        A('v_lshl_add_u32 v124, v126, 1, v124')
        A(f's_mov_b32 s16, s28\ns_mov_b32 s17, s29\ns_mov_b32 s18, {2048*1024*2}\ns_mov_b32 s19, 0x20000')
        for bb, b in enumerate(keep):
            A(f's_waitcnt vmcnt({4 - 4*bb})')
            for a in range(4):
                r = ACC + (a*4+b)*4; x = RX + (bb*4+a)*4
                for j in range(4): A(f'v_add_f32 v{r+j}, v{r+j}, v{x+j}')
            for pr in range(2):
                ra = ACC + ((2*pr)*4+b)*4; rb = ACC + ((2*pr+1)*4+b)*4
                T = 100 + (bb*2+pr)*4
                A(f'v_cvt_pk_bf16_f32 v{T}, v{ra}, v{ra+1}\nv_cvt_pk_bf16_f32 v{T+1}, v{ra+2}, v{ra+3}')
                A(f'v_cvt_pk_bf16_f32 v{T+2}, v{rb}, v{rb+1}\nv_cvt_pk_bf16_f32 v{T+3}, v{rb+2}, v{rb+3}')
                A('s_nop 1')
                A(f'v_permlane16_swap_b32 v{T}, v{T+2}\nv_permlane16_swap_b32 v{T+1}, v{T+3}')
                A(f's_mov_b32 s33, {b*524288}')
                A(f'buffer_store_dwordx4 v[{T}:{T+3}], v124, s[16:19], s33 offen offset:{pr*64}')
        A('s_branch K3_fin')
    A.label('K3_fin')
    if opt.get('stamp'):
        A('s_waitcnt vmcnt(0)\ns_memrealtime s[68:69]\ns_waitcnt lgkmcnt(0)')
        A(f's_add_u32 s8, s6, {WS_DBG + (2 << 16)}\ns_addc_u32 s9, s7, 0\ns_mov_b32 s10, 65536\ns_mov_b32 s11, 0x20000')
        A('s_cmp_lg_u32 s20, 0\ns_cbranch_scc1 K3_end')
        A('s_lshl_b32 s33, s2, 5')
        A(f'v_cmp_eq_u32 vcc, 0, v{LANE}\ns_and_saveexec_b64 s[44:45], vcc\ns_cbranch_execz K3_end')
        A('s_sub_u32 s72, s72, s70')
        for k, sreg in enumerate([60, 62, 64, 66, 68, 72, 74]):
            A(f'v_mov_b32 v122, s{sreg}\nv_mov_b32 v123, s33\nbuffer_store_dword v122, v123, s[8:11], 0 offen offset:{4*k}')
    A('s_branch K3_end')

    A.label('K3_producer')
    A('s_sub_u32 s31, s20, 4        ; p')
    srd(A, 8, 4, 3584*1024*2)
    A(f's_mov_b32 s12, s6\ns_mov_b32 s13, s7\ns_mov_b32 s14, {16 << 20}\ns_mov_b32 s15, 0x20000')
    A(f's_add_u32 s16, s6, {WS_T}\ns_addc_u32 s17, s7, 0\ns_mov_b32 s18, {4 << 20}\ns_mov_b32 s19, 0x20000')
    A(f's_lshl_b32 s26, s24, 20\ns_mul_i32 s27, s23, {56*8192}\ns_add_u32 s46, s26, s27')
    A(f's_lshl_b32 s27, s23, 16\ns_add_u32 s50, s26, s27\ns_add_u32 s50, s50, {112*8192}')
    A(f's_mul_i32 s27, s23, {1792*2048}\ns_lshl_b32 s30, s25, 8\ns_add_u32 s47, s27, s30')
    A('s_and_b32 s27, s24, 3\ns_lshl_b32 s27, s27, 20\ns_lshl_b32 s33, s23, 19\ns_add_u32 s27, s27, s33\ns_add_u32 s51, s27, s30')
    A(f's_lshl_b32 s33, s31, 12\nv_lshlrev_b32 v2, 4, v202\nv_add_u32 v2, s33, v2')
    A('v_lshrrev_b32 v8, 4, v202     ; l>>4\nv_and_b32 v9, 15, v202    ; pos')
    for q in range(4):
        A(f'v_add_u32 v10, {4*q}, v8')
        A('v_and_b32 v11, 7, v10\nv_lshrrev_b32 v12, 1, v9\nv_xor_b32 v11, v11, v12\nv_lshlrev_b32 v11, 5, v11')
        A('v_and_b32 v12, 1, v9\nv_lshl_add_u32 v11, v12, 4, v11')
        A('v_lshl_add_u32 v11, v10, 11, v11    ; + row*2048')
        A(f's_lshl_b32 s33, s31, 15      ; p*16 rows*2048\ns_sub_u32 s33, s33, {1024*q}')
        A(f'v_add_u32 v{4+q}, s33, v11')
    A('s_lshl_b32 s36, s31, 12     ; p*4096 lds')
    for b in range(NB):
        A(f's_add_u32 s{52+2*b}, s36, {b*STG}\ns_add_u32 s{53+2*b}, s36, {b*STG+16384}')
    rot = opt.get('rot', 0)
    if rot:
        A('s_add_u32 s33, s24, s25      ; c = i + jn')
        for k in range(4):
            if rot == 4:
                A(f's_add_u32 s34, s33, {k}\ns_and_b32 s34, s34, 3')
            else:
                A(f's_add_u32 s34, s33, {k}\ns_and_b32 s34, s34, 1\ns_add_u32 s34, s34, {k & 2}')
            A(f's_lshl_b32 s{76+k}, s34, 14\ns_lshl_b32 s{80+k}, s34, 17')
    def issue(buf, wsrd, first=None):
        if rot:
            A(f's_add_u32 s84, s46, s{76+buf}\ns_add_u32 s85, s47, s{80+buf}')
            hs, wsf = 's84', 's85'
        else:
            hs, wsf = 's46', 's47'
        A(f's_mov_b32 m0, s{52+2*buf}')
        A('s_nop 0')
        for q in range(4):
            A(f'buffer_load_dwordx4 v2, s[12:15], {hs} offen offset:{q*1024} lds')
        A(f's_mov_b32 m0, s{53+2*buf}')
        if not rot: A('s_add_u32 s46, s46, %d' % (0 if opt.get('wrap') else 16384))
        else: A('s_nop 0')
        for q in range(4):
            A(f'buffer_load_dwordx4 v{4+q}, s[{wsrd}:{wsrd+3}], {wsf} offen offset:{q*1024} lds')
        if not rot: A(f's_add_u32 s47, s47, {0 if opt.get("wrap") else 64*2048}')
        elif buf == 3: A(f's_add_u32 s46, s46, {4*16384}\ns_add_u32 s47, s47, {4*64*2048}')
    for s in range(4): issue(s, 8)
    A('s_waitcnt vmcnt(24)\ns_barrier       ; Ba')
    A('s_waitcnt vmcnt(16)\ns_barrier       ; Bb')
    A('s_mov_b32 s35, 6')
    A.label('K3_p_loop')
    for buf in range(NB):
        issue(buf, 8)
        A('s_waitcnt vmcnt(16)\ns_barrier')
    A('s_sub_u32 s35, s35, 1\ns_cmp_lg_u32 s35, 0\ns_cbranch_scc1 K3_p_loop')
    A('s_mov_b32 s46, s50\ns_mov_b32 s47, s51')
    for buf in range(NB):
        issue(buf, 16)
        A('s_waitcnt vmcnt(16)\ns_barrier')
    A('s_waitcnt vmcnt(8)\ns_barrier')
    A('s_waitcnt vmcnt(0)\ns_barrier')
    A('s_barrier\ns_barrier')
    A.label('K3_end')
    A('s_endpgm')
    kernel_desc(A, name, 216, 216)
```

```python
import sys
sys.path.insert(0, 'dev')
import build, k1, k2, k3
P = 'gated_mix__spectral_gfnet__dense_activation_silu__prompt'
def make(opt=None):
    opt = dict(opt or {})
    opt.setdefault('rot', 4)
    return build.build([('gm_k1_kernel', k1.gen_k1, 256, 512, 135168),
                        ('gm_k2_kernel', k2.gen_k2, 257, 256, k2.LDS_K2),
                        ('gm_k3_kernel', k3.gen_k3, 256, 512, 131072)], opt)
if __name__ == '__main__':
    txt = make()
    hdr = open(f'cdna_kernels/{P}.s.ref').read().split('; Override launch geometry')[0]
    open(f'cdna_kernels/{P}.s', 'w').write(hdr + txt)
    print(len(txt), 'bytes')
```

```python
class Asm:
    def __init__(self):
        self.lines = []
        self.uid = 0
    def __call__(self, s=''):
        for ln in s.split('\n'):
            self.lines.append(ln if (ln.strip().endswith(':') or ln.startswith('.') or ln.startswith(';')) else '  ' + ln.strip())
    def label(self, name):
        self.lines.append(name + ':')
    def newlabel(self, base):
        self.uid += 1
        return f'L_{base}_{self.uid}'
    def text(self):
        return '\n'.join(self.lines) + '\n'

def vr(i, n=1):
    return f'v{i}' if n == 1 else f'v[{i}:{i+n-1}]'
def ar(i, n=1):
    return f'a{i}' if n == 1 else f'a[{i}:{i+n-1}]'
def sr(i, n=1):
    return f's{i}' if n == 1 else f's[{i}:{i+n-1}]'

def interleave(main, fill, start=0, every=1, per=1):
    out = []
    fi = 0
    for i, m in enumerate(main):
        out.append(m)
        if i >= start and (i - start) % every == 0:
            for _ in range(per):
                if fi < len(fill):
                    out.append(fill[fi]); fi += 1
    out.extend(fill[fi:])
    return out

def kernel_header(A, name):
    A.lines.append('.text')
    A.lines.append(f'.globl {name}')
    A.lines.append('.p2align 8')
    A.lines.append(f'.type {name},@function')
    A.lines.append(f'{name}:')

def kernel_desc(A, name, nvgpr, accum_offset, nsgpr=102):
    A.lines.append('.section .rodata,"a"')
    A.lines.append('.p2align 6')
    A.lines.append(f'.amdhsa_kernel {name}')
    A.lines.append(f'  .amdhsa_next_free_vgpr {nvgpr}')
    A.lines.append(f'  .amdhsa_next_free_sgpr {nsgpr}')
    A.lines.append(f'  .amdhsa_accum_offset {accum_offset}')
    A.lines.append('  .amdhsa_group_segment_fixed_size 0')
    A.lines.append('  .amdhsa_kernarg_size 80')
    A.lines.append('  .amdhsa_user_sgpr_count 2')
    A.lines.append('  .amdhsa_user_sgpr_kernarg_segment_ptr 1')
    A.lines.append('  .amdhsa_system_sgpr_workgroup_id_x 1')
    A.lines.append('.end_amdhsa_kernel')
    A.lines.append('.text')

def srd(A, s, ptr, nbytes):
    A(f's_mov_b32 s{s}, s{ptr}')
    A(f's_mov_b32 s{s+1}, s{ptr+1}')
    A(f's_mov_b32 s{s+2}, {hex(nbytes)}')
    A(f's_mov_b32 s{s+3}, 0x20000')

class VM:
    def __init__(self, A):
        self.A = A; self.q = []
    def op(self, text, tag):
        self.A(text); self.q.append(tag)
    def note(self, tag, n=1):
        self.q += [tag] * n
    def count_after(self, tag):
        idx = max(i for i, t in enumerate(self.q) if t == tag)
        return len(self.q) - 1 - idx
    def wait(self, tag, extra=''):
        n = self.count_after(tag)
        assert n <= 63, n
        self.A(f's_waitcnt vmcnt({n}){extra}')
        idx = max(i for i, t in enumerate(self.q) if t == tag)
        self.q = self.q[idx+1:]
    def wait_all(self, extra=''):
        self.A(f's_waitcnt vmcnt(0){extra}'); self.q = []

class Filler:
    def __init__(self): self.q = []
    def add(self, items):
        for x in items:
            self.q += [y for y in x.split('\n') if y.strip()]
    def take(self, n):
        out = self.q[:n]; self.q = self.q[n:]; return out
    def __len__(self): return len(self.q)
```

```python
import sys
sys.path.insert(0, 'dev')
from asmlib import *
from layout import *
from k1 import f32hex, WS_GV

STG3 = 32768
NB3 = 4
RING = 131072

class K3Regs:
    ACC = 0
    FSV = 64
    VA = [96, 101]
    LANE = 106
    VB = 107
    G = 108
    T = 112

def fs(k):
    return ('a', 32*k) if k < 3 else ('v', K3Regs.FSV)

def c_setup(A, opt):
    R = K3Regs
    LANE = R.LANE
    A('s_and_b32 s31, s20, 1    ; dh\ns_lshr_b32 s32, s20, 1   ; th')
    A(f's_add_u32 s8, s6, {WS_G}\ns_addc_u32 s9, s7, 0\ns_mov_b32 s10, 16384\ns_mov_b32 s11, 0x20000')
    A('s_lshl_b32 s33, s24, 7\ns_lshl_b32 s36, s32, 6\ns_add_u32 s33, s33, s36\ns_lshl_b32 s36, s23, 5\ns_add_u32 s33, s33, s36\ns_lshl_b32 s33, s33, 2')
    A(f'v_and_b32 v{R.T}, 15, v{LANE}\nv_lshlrev_b32 v{R.T}, 2, v{R.T}')
    A('s_add_u32 s36, s33, 8192')
    for bb in range(2):
        A(f'buffer_load_dword v{R.G+bb}, v{R.T}, s[8:11], s36 offen offset:{bb*64} sc1')
        A(f'buffer_load_dword v{R.G+2+bb}, v{R.T}, s[8:11], s33 offen offset:{bb*64} sc1')
    T = R.T
    A(f'v_lshrrev_b32 v{T}, 4, v{LANE}       ; g4')
    A(f'v_bfe_u32 v{T+1}, v{LANE}, 2, 2        ; r')
    A(f'v_and_b32 v{T+2}, 3, v{LANE}           ; c')
    A(f'v_lshl_add_u32 v{T+3}, v{T}, 2, v{T+1} ; row = 4 g4 + r')
    A(f'v_and_b32 v{T+4}, 7, v{T+3}         ; row & 7')
    for a in range(4):
        A(f's_lshl_b32 s33, s31, 2\ns_add_u32 s33, s33, {a}     ; blk')
        A(f'v_xor_b32 v{T+5}, s33, v{T+4}\nv_lshlrev_b32 v{T+5}, 5, v{T+5}')
        A(f'v_lshl_add_u32 v{T+5}, v{T+3}, 8, v{T+5}\nv_lshl_add_u32 v{T+5}, v{T+2}, 3, v{T+5}')
        A(f'v_add_u32 v{R.VA[0]+a}, 16384, v{T+5}')
        A(f'v_add_u32 v{R.VA[1]+a}, {16384+2*STG3}, v{T+5}')
    A(f's_lshl_b32 s33, s32, 12\nv_lshlrev_b32 v{T+5}, 4, v{LANE}\nv_add_u32 v{T+5}, s33, v{T+5}')
    A(f'v_mov_b32 v{R.VA[0]+4}, v{T+5}\nv_add_u32 v{R.VA[1]+4}, {2*STG3}, v{T+5}')
    for i in range(64): A(f'v_mov_b32 v{R.ACC+i}, 0')

def reads(buf, ks, k, nb=4):
    R = K3Regs
    p, f = fs(k)
    va = R.VA[buf >> 1]; base = (buf & 1) * STG3 + ks * 8192
    L = []
    for a in range(4):
        L.append(f'ds_read_b64_tr_b16 {p}[{f+4*a}:{f+4*a+1}], v{va+a} offset:{base}')
        L.append(f'ds_read_b64_tr_b16 {p}[{f+4*a+2}:{f+4*a+3}], v{va+a} offset:{base+4096}')
        if a < nb: L.append(f'ds_read_b128 {p}[{f+16+4*a}:{f+16+4*a+3}], v{va+4} offset:{base+a*1024}')
    return L

def mfmas(k, tiles):
    p, f = fs(k)
    return [f'v_mfma_f32_16x16x32_bf16 v[{acc}:{acc+3}], {p}[{f+4*a}:{f+4*a+3}], {p}[{f+16+4*b}:{f+16+4*b+3}], v[{acc}:{acc+3}]' for a, b, acc in tiles]

def c_main(A, opt, pfx):
    R = K3Regs
    main_tiles = [(a, b, R.ACC + (a*4+b)*4) for a in range(4) for b in range(4)]
    A('s_barrier')
    for x in reads(0, 0, 0) + reads(0, 1, 1): A(x)
    A('s_waitcnt lgkmcnt(0)')
    A('s_barrier')
    if opt.get('stamp'): A('s_memrealtime s[62:63]\ns_memtime s[70:71]')
    A('s_mov_b32 s35, 7')
    A('.p2align 6')
    A.label(f'{pfx}_c_loop')
    for buf in range(NB3):
        cur = [(buf & 1)*2, (buf & 1)*2+1]; nxt = [((buf+1) & 1)*2, ((buf+1) & 1)*2+1]
        mm = []
        for x, y in zip(mfmas(cur[0], main_tiles), mfmas(cur[1], main_tiles)): mm += [x, y]
        rr = reads((buf+1) % NB3, 0, nxt[0]) + reads((buf+1) % NB3, 1, nxt[1])
        for x in interleave(mm, rr): A(x)
        A('s_waitcnt lgkmcnt(0)')
        A('s_barrier')
    A(f's_sub_u32 s35, s35, 1\ns_cmp_lg_u32 s35, 0\ns_cbranch_scc1 {pfx}_c_loop')
    if opt.get('stamp'): A('s_memrealtime s[64:65]\ns_memtime s[72:73]')

def c_tail(A, opt, pfx, flag_slots=False):
    R = K3Regs; T = R.T; LANE = R.LANE
    A('s_lshl_b32 s33, s24, 3\ns_add_u32 s33, s33, s25')
    A(f's_add_u32 s8, s6, {WS_X}\ns_addc_u32 s9, s7, 0\ns_mov_b32 s10, {8 << 20}\ns_mov_b32 s11, 0x20000')
    A(f's_add_u32 s12, s6, {WS_FLAG}\ns_addc_u32 s13, s7, 0\ns_mov_b32 s14, 4096\ns_mov_b32 s15, 0x20000')
    A('s_lshl_b32 s36, s33, 1\ns_add_u32 s37, s36, s23\ns_lshl_b32 s37, s37, 2\ns_add_u32 s37, s37, s20')
    A('s_xor_b32 s38, s23, 1\ns_add_u32 s38, s36, s38\ns_lshl_b32 s38, s38, 2\ns_add_u32 s38, s38, s20')
    A('s_lshl_b32 s39, s37, 13\ns_lshl_b32 s40, s38, 13')
    A('s_lshl_b32 s41, s37, 2\ns_lshl_b32 s42, s38, 2')
    if flag_slots:
        A('s_mov_b32 s14, 32768')
        A('s_lshl_b32 s36, s24, 4\ns_add_u32 s37, s36, s22\ns_xor_b32 s38, s22, 8\ns_add_u32 s38, s36, s38')
        A('s_lshl_b32 s36, s20, 2\ns_add_u32 s36, s36, 64')
        A('s_lshl_b32 s41, s38, 7\ns_add_u32 s41, s41, s36\ns_lshl_b32 s42, s37, 7\ns_add_u32 s42, s42, s36')
    A(f'v_lshlrev_b32 v{T}, 4, v{LANE}\nv_add_u32 v{T+1}, 4096, v{T}')
    A(f's_mov_b32 s16, s28\ns_mov_b32 s17, s29\ns_mov_b32 s18, {2048*1024*2}\ns_mov_b32 s19, 0x20000')
    A('s_nop 3')
    for kh in range(2):
        if kh == 0: A(f's_cmp_lg_u32 s23, 0\ns_cbranch_scc1 {pfx}_x1')
        else: A.label(f'{pfx}_x1')
        keep = [2*kh, 2*kh+1]; send = [2*(1-kh), 2*(1-kh)+1]
        for bb, b in enumerate(send):
            for a in range(4):
                r = R.ACC + (a*4+b)*4
                A(f'buffer_store_dwordx4 v[{r}:{r+3}], v{T+bb}, s[8:11], s39 offen offset:{a*1024} sc0 sc1')
        A('s_nop 1')
        for b in send:
            for a in range(4):
                for j in range(4): A(f'v_mov_b32 v{R.ACC + (a*4+b)*4 + j}, 0')
        ext_tiles = [(a, bb, R.ACC + (a*4+send[bb])*4) for a in range(4) for bb in range(2)]
        for r in list(range(R.VA[0], R.VA[0]+4)) + list(range(R.VA[1], R.VA[1]+4)): A(f'v_subrev_u32 v{r}, 16384, v{r}')
        A(f's_lshl_b32 s33, s32, 11\ns_add_u32 s33, s33, {RING}\nv_lshlrev_b32 v{R.VB}, 4, v{LANE}\nv_add_u32 v{R.VB}, s33, v{R.VB}')
        def ereads(e, ks, k, onlyB=False):
            p, f = fs(k)
            E = (e >> 1) & 3
            va = R.VA[E >> 1]; base = (E & 1) * STG3 + (16384 if e % 2 == 0 else 0) + ks * 8192
            L = []
            for a in range(4):
                if not onlyB:
                    L.append(f'ds_read_b64_tr_b16 {p}[{f+4*a}:{f+4*a+1}], v{va+a} offset:{base}')
                    L.append(f'ds_read_b64_tr_b16 {p}[{f+4*a+2}:{f+4*a+3}], v{va+a} offset:{base+4096}')
                if a < 2: L.append(f'ds_read_b128 {p}[{f+16+4*a}:{f+16+4*a+3}], v{R.VB} offset:{(e & 3)*8192 + ks*4096 + a*1024}')
            return L
        for x in ereads(0, 0, 0, True) + ereads(0, 1, 1, True): A(x)
        A('s_mov_b32 s35, 2\ns_waitcnt lgkmcnt(0)')
        A('.p2align 6')
        A.label(f'{pfx}_e_loop{kh}')
        for e4 in range(4):
            cur = [(e4 & 1)*2, (e4 & 1)*2+1]; nxt = [((e4+1) & 1)*2, ((e4+1) & 1)*2+1]
            mm = []
            for x, y in zip(mfmas(cur[0], ext_tiles), mfmas(cur[1], ext_tiles)): mm += [x, y]
            rr = ereads(e4+1, 0, nxt[0]) + ereads(e4+1, 1, nxt[1])
            for x in interleave(mm, rr, per=2): A(x)
            A('s_waitcnt lgkmcnt(0)')
            A('s_barrier')
        for r in range(R.VA[0], R.VA[0]+4): A(f'v_add_u32 v{r}, {2*STG3}, v{r}')
        A(f's_cmp_eq_u32 s35, 2\ns_cbranch_scc0 {pfx}_nf{kh}')
        if opt.get('stamp'): A('s_memrealtime s[76:77]')
        A('s_waitcnt vmcnt(0)')
        if opt.get('stamp'): A('s_memrealtime s[74:75]')
        A(f'v_mov_b32 v{T+2}, 1\nv_mov_b32 v{T+3}, s41')
        A(f'v_cmp_eq_u32 vcc, 0, v{LANE}\ns_and_saveexec_b64 s[44:45], vcc')
        A(f'buffer_store_dword v{T+2}, v{T+3}, s[12:15], 0 offen sc0 sc1')
        A('s_mov_b64 exec, s[44:45]')
        A.label(f'{pfx}_nf{kh}')
        A(f's_sub_u32 s35, s35, 1\ns_cmp_lg_u32 s35, 0\ns_cbranch_scc1 {pfx}_e_loop{kh}')
        if opt.get('stamp'): A('s_memrealtime s[78:79]')
        lp = f'{pfx}_poll{kh}'
        A(f'v_mov_b32 v{T+3}, s42\ns_mov_b32 s48, 0')
        A.label(lp)
        A(f'buffer_load_dword v{T+2}, v{T+3}, s[12:15], 0 offen sc0 sc1\ns_waitcnt vmcnt(0)')
        A(f'v_readfirstlane_b32 s43, v{T+2}\ns_cmp_eq_u32 s43, 1')
        A(f's_cbranch_scc1 {lp}_ok\ns_add_u32 s48, s48, 1\ns_cmp_lt_u32 s48, 0x40000\ns_cbranch_scc0 {lp}_ok\ns_sleep 1\ns_branch {lp}')
        A.label(lp + '_ok')
        if opt.get('stamp'): A('s_memrealtime s[66:67]')
        RX = 64
        for bb in range(2):
            for a in range(4):
                r = RX + (bb*4+a)*4
                A(f'buffer_load_dwordx4 v[{r}:{r+3}], v{T+bb}, s[8:11], s40 offen offset:{a*1024} sc0 sc1')
        A(f'v_and_b32 v{T+4}, 15, v{LANE}           ; t')
        A(f'v_lshrrev_b32 v{T+5}, 4, v{LANE}        ; g4')
        A(f's_lshl_b32 s33, s32, 6\nv_add_u32 v{T+4}, s33, v{T+4}   ; m = 64 th + t (+16 b)')
        A(f'v_lshlrev_b32 v{T+4}, 4, v{T+4}\nv_add_u32 v{T+4}, s24, v{T+4}   ; s = i + 16 m')
        A(f'v_lshlrev_b32 v{T+4}, 11, v{T+4}      ; * 2048 B')
        A(f'v_and_b32 v{T+6}, 1, v{T+5}\nv_lshlrev_b32 v{T+6}, 4, v{T+6}\nv_lshrrev_b32 v{T+7}, 1, v{T+5}\nv_lshl_add_u32 v{T+6}, v{T+7}, 3, v{T+6}')
        A(f's_lshl_b32 s33, s25, 7\ns_lshl_b32 s36, s31, 6\ns_add_u32 s33, s33, s36\nv_add_u32 v{T+6}, s33, v{T+6}')
        A(f'v_lshl_add_u32 v{T+4}, v{T+6}, 1, v{T+4}')
        Q = T + 8
        for bb, b in enumerate(keep):
            for a in range(4):
                ra = R.ACC + (a*4+send[bb])*4
                A(f'v_cvt_pk_bf16_f32 v{Q}, v{ra}, v{ra+1}\nv_cvt_pk_bf16_f32 v{Q+1}, v{ra+2}, v{ra+3}')
                A(f'v_lshlrev_b32 v{ra}, 16, v{Q}\nv_and_b32 v{ra+1}, 0xffff0000, v{Q}\nv_lshlrev_b32 v{ra+2}, 16, v{Q+1}\nv_and_b32 v{ra+3}, 0xffff0000, v{Q+1}')
                for j in range(4): A(f'v_mul_f32 v{ra+j}, v{ra+j}, v{R.G+bb}')
                A(f'v_cvt_pk_bf16_f32 v{Q}, v{ra}, v{ra+1}\nv_cvt_pk_bf16_f32 v{Q+1}, v{ra+2}, v{ra+3}')
                A(f'v_lshlrev_b32 v{ra}, 16, v{Q}\nv_and_b32 v{ra+1}, 0xffff0000, v{Q}\nv_lshlrev_b32 v{ra+2}, 16, v{Q+1}\nv_and_b32 v{ra+3}, 0xffff0000, v{Q+1}')
        for bb, b in enumerate(keep):
            A(f's_waitcnt vmcnt({4 - 4*bb})')
            for a in range(4):
                r = R.ACC + (a*4+b)*4; x = RX + (bb*4+a)*4; ra = R.ACC + (a*4+send[bb])*4
                for j in range(4): A(f'v_add_f32 v{r+j}, v{r+j}, v{x+j}')
                A(f'v_cvt_pk_bf16_f32 v{Q}, v{r}, v{r+1}\nv_cvt_pk_bf16_f32 v{Q+1}, v{r+2}, v{r+3}')
                A(f'v_lshlrev_b32 v{r}, 16, v{Q}\nv_and_b32 v{r+1}, 0xffff0000, v{Q}\nv_lshlrev_b32 v{r+2}, 16, v{Q+1}\nv_and_b32 v{r+3}, 0xffff0000, v{Q+1}')
                for j in range(4): A(f'v_mul_f32 v{r+j}, v{r+j}, v{R.G+2+bb}')
                A(f'v_cvt_pk_bf16_f32 v{Q}, v{r}, v{r+1}\nv_cvt_pk_bf16_f32 v{Q+1}, v{r+2}, v{r+3}')
                A(f'v_lshlrev_b32 v{r}, 16, v{Q}\nv_and_b32 v{r+1}, 0xffff0000, v{Q}\nv_lshlrev_b32 v{r+2}, 16, v{Q+1}\nv_and_b32 v{r+3}, 0xffff0000, v{Q+1}')
                for j in range(4): A(f'v_add_f32 v{r+j}, v{r+j}, v{ra+j}')
            for pr in range(2):
                ra = R.ACC + ((2*pr)*4+b)*4; rb = R.ACC + ((2*pr+1)*4+b)*4
                O = 128 + (bb*2+pr)*4
                A(f'v_cvt_pk_bf16_f32 v{O}, v{ra}, v{ra+1}\nv_cvt_pk_bf16_f32 v{O+1}, v{ra+2}, v{ra+3}')
                A(f'v_cvt_pk_bf16_f32 v{O+2}, v{rb}, v{rb+1}\nv_cvt_pk_bf16_f32 v{O+3}, v{rb+2}, v{rb+3}')
                A('s_nop 1')
                A(f'v_permlane16_swap_b32 v{O}, v{O+2}\nv_permlane16_swap_b32 v{O+1}, v{O+3}')
                A(f's_mov_b32 s33, {b*524288}')
                A(f'buffer_store_dwordx4 v[{O}:{O+3}], v{T+4}, s[16:19], s33 offen offset:{pr*64}')
        A(f's_branch {pfx}_fin')

def p_setup(A, opt):
    L = K3Regs.LANE
    A('s_sub_u32 s31, s20, 4        ; p')
    srd(A, 8, 4, 3584*1024*2)
    A(f's_mov_b32 s12, s6\ns_mov_b32 s13, s7\ns_mov_b32 s14, {16 << 20}\ns_mov_b32 s15, 0x20000')
    A(f's_add_u32 s16, s6, {WS_T}\ns_addc_u32 s17, s7, 0\ns_mov_b32 s18, {4 << 20}\ns_mov_b32 s19, 0x20000')
    A(f's_lshl_b32 s26, s24, 20\ns_mul_i32 s27, s23, {56*8192}\ns_add_u32 s46, s26, s27       ; h base')
    A(f's_mul_i32 s27, s23, {1792*2048}\ns_lshl_b32 s30, s25, 8\ns_add_u32 s47, s27, s30      ; w2 base')
    A('s_and_b32 s27, s24, 3\ns_lshl_b32 s27, s27, 20\ns_add_u32 s51, s27, s30      ; T base')
    A(f's_lshl_b32 s33, s31, 12\nv_lshlrev_b32 v2, 4, v{L}\nv_add_u32 v2, s33, v2')
    A(f'v_lshrrev_b32 v8, 4, v{L}     ; l>>4\nv_and_b32 v9, 15, v{L}    ; pos')
    for q in range(4):
        A(f'v_add_u32 v10, {4*q}, v8')
        A('v_and_b32 v11, 7, v10\nv_lshrrev_b32 v12, 1, v9\nv_xor_b32 v11, v11, v12\nv_lshlrev_b32 v11, 5, v11')
        A('v_and_b32 v12, 1, v9\nv_lshl_add_u32 v11, v12, 4, v11')
        A('v_lshl_add_u32 v11, v10, 11, v11    ; + row*2048')
        A(f's_lshl_b32 s33, s31, 15      ; p*16 rows*2048\ns_sub_u32 s33, s33, {1024*q}')
        A(f'v_add_u32 v{4+q}, s33, v11')
    A('s_lshl_b32 s36, s31, 12     ; p*4096 lds')
    for b in range(NB3):
        A(f's_add_u32 s{52+2*b}, s36, {b*STG3}\ns_add_u32 s{53+2*b}, s36, {b*STG3+16384}')
    A('s_lshr_b32 s33, s24, 2\ns_add_u32 s33, s33, s25      ; c = (i>>2) + jn')
    for k in range(4):
        A(f's_add_u32 s34, s33, {k}\ns_and_b32 s34, s34, 3')
        A(f's_lshl_b32 s{76+k}, s34, 14\ns_lshl_b32 s{80+k}, s34, 17')

EXT0 = 32

def ext_gen(opt, T=16):
    L = K3Regs.LANE
    I = []
    I += ['s_lshr_b32 s33, s31, 1', 's_lshl_b32 s33, s33, 2', 's_lshl_b32 s34, s23, 1', 's_add_u32 s33, s33, s34', 's_and_b32 s34, s31, 1', 's_add_u32 s33, s33, s34',
          's_lshl_b32 s33, s33, 6', 's_lshr_b32 s34, s24, 2', 's_add_u32 s33, s33, s34']
    I += [f'v_and_b32 v{T}, 15, v{L}', f'v_lshlrev_b32 v{T}, 2, v{T}', f'v_add_u32 v{T}, s33, v{T}', f'v_cvt_f32_u32 v{T}, v{T}',
          f'v_mul_f32 v{T}, {f32hex(1/512)}, v{T}']
    I += [f'v_lshrrev_b32 v{T+1}, 4, v{L}', f'v_lshlrev_b32 v{T+1}, 1, v{T+1}', f'v_cvt_f32_u32 v{T+1}, v{T+1}',
          f'v_mul_f32 v{T+1}, v{T+1}, v{T}', f'v_add_f32 v{T+2}, {f32hex(0.25)}, v{T+1}']
    for F in range(16):
        for i in range(8):
            cst = 16*F + 8*(i >> 2) + ((i & 3) >> 1)
            I.append(f'v_fmamk_f32 v{T+4+i}, v{T}, {f32hex(float(cst))}, v{T+1+(i & 1)}')
        if F == 0:
            I += [f'v_cmp_gt_u32 vcc, 16, v{L}', f'v_mul_f32 v{T+3}, {f32hex(256.0)}, v{T}', 's_nop 0', f'v_cndmask_b32 v{T+5}, v{T+5}, v{T+3}, vcc']
        for i in range(8): I.append(f'v_fract_f32 v{T+4+i}, v{T+4+i}')
        for i in range(8): I.append(f'v_cos_f32 v{T+4+i}, v{T+4+i}')
        I.append('s_nop 0')
        for i in range(4): I.append(f'v_cvt_pk_bf16_f32 v{EXT0+F*4+i}, v{T+4+2*i}, v{T+5+2*i}')
    return I

def p_main(A, opt, pfx, pre_issue=None):
    L = K3Regs.LANE
    fill = ext_gen(opt)
    fi = [0]
    def take(n):
        out = fill[fi[0]:fi[0]+n]; fi[0] += n; return out
    def issue(buf, ext, nfill=0):
        A(f's_add_u32 s84, s46, s{76+buf}\ns_add_u32 s85, s47, s{80+buf}')
        if not ext:
            A(f's_mov_b32 m0, s{52+2*buf}\ns_nop 0')
            for q in range(4):
                A(f'buffer_load_dwordx4 v2, s[12:15], s84 offen offset:{q*1024} sc1 lds')
                for x in take(nfill): A(x)
            A(f's_mov_b32 m0, s{53+2*buf}\ns_nop 0')
            for q in range(4):
                A(f'buffer_load_dwordx4 v{4+q}, s[8:11], s85 offen offset:{q*1024} lds')
                for x in take(nfill): A(x)
            if buf == 3: A(f's_add_u32 s46, s46, {4*16384}\ns_add_u32 s47, s47, {4*64*2048}')
    for s in range(4): issue(s, False)
    A(f's_lshl_b32 s33, s31, 10\ns_add_u32 s33, s33, {RING}\nv_lshlrev_b32 v12, 4, v{L}\nv_add_u32 v12, s33, v12')
    A('s_waitcnt vmcnt(24)\ns_barrier       ; Ba')
    A('s_waitcnt vmcnt(16)\ns_barrier       ; Bb')
    nper = (len(fill) + 24*8 - 1) // (24*8)
    for s in range(24):
        issue(s & 3, False, nfill=nper)
        A('s_waitcnt vmcnt(16)\ns_barrier')
    for x in fill[fi[0]:]: A(x)
    def wfrag(e):
        for ks in range(2):
            F = 2*e + ks
            A(f'ds_write_b128 v12, v[{EXT0+F*4}:{EXT0+F*4+3}] offset:{(e & 3)*8192 + ks*4096}')
    for E in range(4):
        A(f's_mov_b32 m0, s{53+2*E}')
        A(f's_add_u32 s85, s51, {2*E*64*2048}')
        for q in range(4):
            A(f'buffer_load_dwordx4 v{4+q}, s[16:19], s85 offen offset:{q*1024} sc1 lds')
        A(f's_mov_b32 m0, s{52+2*E}')
        A(f's_add_u32 s85, s51, {(2*E+1)*64*2048}')
        for q in range(4):
            A(f'buffer_load_dwordx4 v{4+q}, s[16:19], s85 offen offset:{q*1024} sc1 lds')
        wfrag(E)
        A(f's_waitcnt vmcnt(16) lgkmcnt(0)\ns_barrier')
    A('s_barrier')
    for e in range(4, 8):
        wfrag(e)
        n = {4: 8, 5: 8, 6: 0, 7: 0}[e]
        A(f's_waitcnt vmcnt({n}) lgkmcnt(0)\ns_barrier')
    A('s_barrier\ns_barrier\ns_barrier')

def gen_k3b(A, name, opt=None):
    opt = opt or {}
    R = K3Regs
    kernel_header(A, name)
    A('s_cmp_ge_u32 s2, 256\ns_cbranch_scc1 K3_end')
    A('s_load_dwordx2 s[4:5], s[0:1], 40')
    A('s_load_dwordx2 s[6:7], s[0:1], 72')
    A('s_load_dwordx2 s[28:29], s[0:1], 56')
    if opt.get('stamp'): A('s_memrealtime s[60:61]')
    A('v_lshrrev_b32 v1, 6, v0\ns_nop 0\nv_readfirstlane_b32 s20, v1')
    A(f'v_and_b32 v{R.LANE}, 63, v0')
    A('s_and_b32 s21, s2, 7\ns_lshr_b32 s22, s2, 3')
    A('s_lshr_b32 s23, s21, 2          ; kh')
    A('s_and_b32 s24, s21, 3           ; mq')
    A('s_and_b32 s25, s22, 3\ns_lshl_b32 s25, s25, 2\ns_add_u32 s24, s24, s25')
    A('s_lshr_b32 s25, s22, 2')
    A('s_waitcnt lgkmcnt(0)')
    A('s_cmp_ge_u32 s20, 4\ns_cbranch_scc1 K3_producer')
    c_setup(A, opt)
    c_main(A, opt, 'K3')
    c_tail(A, opt, 'K3')
    A.label('K3_fin')
    if opt.get('stamp'):
        T = R.T
        A('s_waitcnt vmcnt(0)\ns_memrealtime s[68:69]\ns_waitcnt lgkmcnt(0)')
        A(f's_add_u32 s8, s6, {WS_DBG + (2 << 16)}\ns_addc_u32 s9, s7, 0\ns_mov_b32 s10, 65536\ns_mov_b32 s11, 0x20000')
        A('s_cmp_lg_u32 s20, 0\ns_cbranch_scc1 K3_end')
        A('s_lshl_b32 s33, s2, 5\ns_sub_u32 s72, s72, s70')
        A(f'v_cmp_eq_u32 vcc, 0, v{R.LANE}\ns_and_saveexec_b64 s[44:45], vcc\ns_cbranch_execz K3_end')
        for k, sreg in enumerate([60, 62, 64, 66, 68, 78, 74, 76]):
            A(f'v_mov_b32 v{T}, s{sreg}\nv_mov_b32 v{T+1}, s33\nbuffer_store_dword v{T}, v{T+1}, s[8:11], 0 offen offset:{4*k}')
    A('s_branch K3_end')
    A.label('K3_producer')
    p_setup(A, opt)
    p_main(A, opt, 'K3')
    A.label('K3_end')
    A('s_endpgm')
    kernel_desc(A, name, 256, 160)
```

```python
import sys
sys.path.insert(0, 'dev')
from asmlib import *
from layout import *
from k1 import f32hex
import k3b

STG = 45056
SB = 45056
XB = 135168
XROW = 2080
CNT = 163584
WS_GV = WS_G + 8192
NL2E = f32hex(-1.4426950408889634)
SPIN = 0x100000

S_WG, S_WAVE, S_U, S_KH, S_I, S_J, S_C, S_NG, S_JN = 2, 20, 21, 23, 24, 25, 26, 27, 30
P_X, P_WS, P_OUT, P_W1, P_W2, P_GW, P_WR, P_WI, P_DBG = 4, 6, 28, 88, 90, 92, 94, 96, 98

def ptr_srd(A, s, ptr, off, nbytes):
    if off: A(f's_add_u32 s{s}, s{ptr}, {off}\ns_addc_u32 s{s+1}, s{ptr+1}, 0')
    else: A(f's_mov_b32 s{s}, s{ptr}\ns_mov_b32 s{s+1}, s{ptr+1}')
    A(f's_mov_b32 s{s+2}, {hex(nbytes)}\ns_mov_b32 s{s+3}, 0x20000')

def stamp(A, opt, k, vreg):
    if opt.get('stamp'):
        A(f's_memrealtime s[100:101]\ns_waitcnt lgkmcnt(0)\nv_writelane_b32 v{vreg}, s100, {k}')

def poll(A, name, srd, voff, soff, want, tmpv, stmp, lanes_mask=None, cnt='s49'):
    A(f's_mov_b32 {cnt}, 0')
    A.label(name)
    A(f'buffer_load_dword v{tmpv}, v{voff}, s[{srd}:{srd+3}], {soff} offen sc0 sc1\ns_waitcnt vmcnt(0)')
    A(f'v_cmp_ne_u32 vcc, {want}, v{tmpv}\ns_nop 1')
    if lanes_mask is not None: A(f's_and_b32 vcc_lo, vcc_lo, {lanes_mask}\ns_mov_b32 vcc_hi, 0')
    A(f's_cmp_eq_u64 vcc, 0\ns_cbranch_scc1 {name}_ok')
    A(f's_add_u32 {cnt}, {cnt}, 1\ns_cmp_lt_u32 {cnt}, {SPIN}\ns_cbranch_scc0 {name}_ok\ns_sleep 1\ns_branch {name}')
    A.label(name + '_ok')

def c1(A, opt):
    ACC = 0
    LANE, VAE, VAO, VB0, VB1, T0 = 112, 113, 114, 115, 116, 117
    STV = 127
    A(f'v_and_b32 v{LANE}, 63, v0')
    if opt.get('stamp'): A(f'v_mov_b32 v{STV}, 0')
    stamp(A, opt, 0, STV)
    A('s_lshr_b32 s31, s20, 1     ; fh\ns_and_b32 s32, s20, 1      ; th')
    A(f'v_lshrrev_b32 v1, 4, v{LANE}       ; g4')
    A(f'v_bfe_u32 v2, v{LANE}, 2, 2        ; r')
    A(f'v_and_b32 v3, 3, v{LANE}           ; c')
    A('v_lshl_add_u32 v4, v1, 3, v2\nv_mul_u32_u24 v4, 448, v4\nv_lshl_add_u32 v4, v3, 3, v4')
    A('s_mul_i32 s33, s31, 224\ns_add_u32 s33, s33, 16384\nv_add_u32 v4, s33, v4')
    A('v_and_b32 v5, 1, v1\nv_lshlrev_b32 v5, 5, v5      ; s*32')
    A('v_add_u32 v6, v4, v5\nv_sub_u32 v7, v4, v5')
    A('s_cmp_eq_u32 s31, 0\ns_cselect_b64 vcc, -1, 0')
    A(f'v_cndmask_b32 v{VAE}, v7, v6, vcc\nv_cndmask_b32 v{VAO}, v6, v7, vcc')
    A(f'v_and_b32 v4, 15, v{LANE}\nv_lshrrev_b32 v5, 1, v4\nv_xor_b32 v5, v5, v1\nv_lshlrev_b32 v5, 4, v5')
    A(f'v_lshl_add_u32 v5, v4, 7, v5\ns_lshl_b32 s33, s32, 13\nv_add_u32 v{VB0}, s33, v5\nv_xor_b32 v{VB1}, 64, v{VB0}')
    for i in range(112): A(f'v_mov_b32 v{ACC+i}, 0')
    def aslot(a, s): return (a if a < 6 else 6 + (s & 1)) * 8
    def bset(s): return ('a', 64) if (s & 1) == 0 else ('v', 128)
    def readA(a, s):
        va = VAE if a % 2 == 0 else VAO
        base = aslot(a, s); L = []
        for ks in range(2):
            off = ks * 32 * 448 + a * 32
            L.append(f'ds_read_b64_tr_b16 a[{base+4*ks}:{base+4*ks+1}], v{va} offset:{off}')
            L.append(f'ds_read_b64_tr_b16 a[{base+4*ks+2}:{base+4*ks+3}], v{va} offset:{off+4*448}')
        return L
    def readB(s):
        p, base = bset(s); L = []
        for b in range(4):
            for ks in range(2):
                r = base + (b*2+ks)*4
                L.append(f'ds_read_b128 {p}[{r}:{r+3}], v{VB0 if ks == 0 else VB1} offset:{b*2048}')
        return L
    def group(a, s):
        base = aslot(a, s); p, bb = bset(s); L = []
        for b in range(4):
            acc = ACC + (a*4+b)*4
            for ks in range(2):
                r = bb + (b*2+ks)*4
                L.append(f'v_mfma_f32_16x16x32_bf16 v[{acc}:{acc+3}], a[{base+4*ks}:{base+4*ks+3}], {p}[{r}:{r+3}], v[{acc}:{acc+3}]')
        return L
    def advance():
        return (['s_add_u32 s40, s40, 1', 's_cmp_eq_u32 s40, 3', 's_cselect_b32 s41, s44, s43', 's_cselect_b32 s40, 0, s40'],
                [f'v_add_u32 v{r}, s41, v{r}' for r in (VAE, VAO, VB0, VB1)])
    A(f's_mov_b32 s40, 0\ns_mov_b32 s42, 8\ns_mov_b32 s43, {STG}\ns_mov_b32 s44, {-2*STG & 0xffffffff}')
    A('s_barrier')
    for x in readB(0): A(x)
    for a in (0, 1, 2, 3, 4, 6):
        for x in readA(a, 0): A(x)
    A('s_waitcnt lgkmcnt(0)')
    stamp(A, opt, 1, STV)
    A('.p2align 6')
    A.label('C1_loop')
    for s in range(2):
        sa, va = advance()
        L = interleave(group(0, s), readA(5, s), start=0, every=1, per=2)
        for x in interleave(L, sa, start=8, every=1, per=1): A(x)
        for x in va: A(x)
        A('s_waitcnt lgkmcnt(0)')
        A('s_barrier')
        fills = [[] for _ in range(7)]
        fills[1] = readB(s+1)
        fills[2] = readA(0, s+1) + readA(6, s+1)
        for a in range(1, 5): fills[a+2] = readA(a, s+1)
        for a in range(1, 7):
            for x in interleave(group(a, s), fills[a], start=0, every=1, per=1): A(x)
    A('s_sub_u32 s42, s42, 1\ns_cmp_lg_u32 s42, 0\ns_cbranch_scc1 C1_loop')
    A('s_waitcnt lgkmcnt(0)')
    stamp(A, opt, 2, STV)
    ptr_srd(A, 8, P_WS, WS_H, 16 << 20)
    ptr_srd(A, 12, P_DBG, 0, 256)
    A(f'v_mov_b32 v{T0+8}, 0\nbuffer_load_dword v{T0+7}, v{T0+8}, s[12:15], 0 offen sc0 sc1')
    A('s_lshl_b32 s33, s24, 20\ns_mul_i32 s34, s25, 57344\ns_add_u32 s33, s33, s34     ; i*1MB + 7j*8192')
    A('s_lshl_b32 s34, s32, 12\ns_add_u32 s33, s33, s34     ; + th*4*1024')
    A(f'v_lshlrev_b32 v{T0}, 4, v{LANE}\nv_add_u32 v{T0+1}, 8, v{T0}')
    A('s_nop 4')
    TT = 128
    def silu(regs):
        n = len(regs)
        for k, r in enumerate(regs): A(f'v_mul_f32 v{TT+k}, {NL2E}, v{r}')
        for k in range(n): A(f'v_exp_f32 v{TT+k}, v{TT+k}')
        for k in range(n): A(f'v_add_f32 v{TT+k}, 1.0, v{TT+k}')
        for k in range(n): A(f'v_rcp_f32 v{TT+k}, v{TT+k}')
        for k, r in enumerate(regs): A(f'v_mul_f32 v{r}, v{r}, v{TT+k}')
    for fh in range(2):
        if fh == 0: A('s_cmp_lg_u32 s31, 0\ns_cbranch_scc1 C1_epi1')
        else: A.label('C1_epi1')
        if fh == 0: items = [((0, 1), 0), ((2, 3), 1), ((4, 5), 2), ((6,), 3)]
        else: items = [((0,), 3), ((1, 2), 4), ((3, 4), 5), ((5, 6), 6)]
        for b in range(4):
            for tiles, q in items:
                regs = []
                for a in tiles: regs += [ACC + (a*4+b)*4 + j for j in range(4)]
                silu(regs)
                r0 = regs[0]
                A(f'v_cvt_pk_bf16_f32 v{r0}, v{regs[0]}, v{regs[1]}\nv_cvt_pk_bf16_f32 v{r0+1}, v{regs[2]}, v{regs[3]}')
                if len(tiles) == 2:
                    A(f'v_cvt_pk_bf16_f32 v{r0+2}, v{regs[4]}, v{regs[5]}\nv_cvt_pk_bf16_f32 v{r0+3}, v{regs[6]}, v{regs[7]}')
                    A(f's_add_u32 s34, s33, {q*8192 + b*1024}')
                    A(f'buffer_store_dwordx4 v[{r0}:{r0+3}], v{T0}, s[8:11], s34 offen sc0 sc1')
                else:
                    A(f's_add_u32 s34, s33, {q*8192 + b*1024}')
                    A(f'buffer_store_dwordx2 v[{r0}:{r0+1}], v{T0 if fh == 0 else T0+1}, s[8:11], s34 offen sc0 sc1')
        A('s_branch C1_stored')
    A.label('C1_stored')
    stamp(A, opt, 3, STV)
    A('s_waitcnt vmcnt(0)')
    stamp(A, opt, 4, STV)
    A(f'v_readfirstlane_b32 s34, v{T0+7}\ns_cmp_eq_u32 s34, 256\ns_cbranch_scc1 C1_a_ok')
    poll(A, 'C1_polla', 12, T0+8, 0, 256, T0+7, None)
    A.label('C1_a_ok')
    A(f'v_mov_b32 v{TT}, {CNT+4}\nv_mov_b32 v{TT+1}, 1')
    A(f's_mov_b64 exec, 1\nds_add_rtn_u32 v{TT+2}, v{TT}, v{TT+1}\ns_waitcnt lgkmcnt(0)\ns_mov_b64 exec, -1')
    A(f'v_readfirstlane_b32 s34, v{TT+2}\ns_cmp_eq_u32 s34, 3\ns_cbranch_scc0 C1_noflag')
    ptr_srd(A, 12, P_WS, WS_FLAG, 32768)
    A(f's_lshl_b32 s33, s24, 4\ns_lshl_b32 s34, s23, 3\ns_add_u32 s33, s33, s34\ns_lshl_b32 s33, s33, 7     ; (i*16 + 8 kh)*128')
    A(f's_and_b32 s34, s25, 7\ns_lshl_b32 s34, s34, 2\ns_add_u32 s33, s33, s34')
    A(f'v_lshlrev_b32 v{TT}, 7, v{LANE}\nv_mov_b32 v{TT+1}, 1')
    A(f's_mov_b64 exec, 0xff\nbuffer_store_dword v{TT+1}, v{TT}, s[12:15], s33 offen sc0 sc1\ns_mov_b64 exec, -1')
    A.label('C1_noflag')
    stamp(A, opt, 5, STV)
    R = k3b.K3Regs
    A(f'v_mov_b32 v{R.LANE}, v{LANE}')
    if opt.get('stamp'): A(f'v_mov_b32 v{C2_STV}, v{STV}')

C2_STV = 159

def c2(A, opt):
    R = k3b.K3Regs; T = R.T; LANE = R.LANE
    A('s_mov_b32 s25, s30      ; jn')
    o = dict(opt); o.pop('stamp', None)
    k3b.c_setup(A, o)
    stamp(A, opt, 6, C2_STV)
    k3b.c_main(A, o, 'C2')
    stamp(A, opt, 8, C2_STV)
    k3b.c_tail(A, o, 'C2', flag_slots=True)
    A.label('C2_fin')
    if opt.get('stamp'):
        A('s_waitcnt vmcnt(0)')
        stamp(A, opt, 9, C2_STV)
        ptr_srd(A, 8, P_WS, WS_DBG, 1 << 20)
        A(f's_cmp_lg_u32 s20, 0\ns_cbranch_scc1 MG_end')
        A(f's_lshl_b32 s33, s2, 8\nv_lshlrev_b32 v{T}, 2, v{LANE}\nbuffer_store_dword v{C2_STV}, v{T}, s[8:11], s33 offen')
    A('s_branch MG_end')

def pbar(A, n, tv):
    A('s_waitcnt lgkmcnt(0)')
    A(f'v_mov_b32 v{tv}, {CNT}\nv_mov_b32 v{tv+1}, 1')
    A(f's_mov_b64 exec, 1\nds_add_u32 v{tv}, v{tv+1}\ns_mov_b64 exec, -1')
    lb = f'PB_{n}'
    A('s_mov_b32 s49, 0')
    A.label(lb)
    A(f'ds_read_b32 v{tv+2}, v{tv}\ns_waitcnt lgkmcnt(0)\nv_readfirstlane_b32 s48, v{tv+2}')
    A(f's_cmp_ge_u32 s48, {4*n}\ns_cbranch_scc1 {lb}_ok')
    A(f's_add_u32 s49, s49, 1\ns_cmp_lt_u32 s49, {SPIN}\ns_cbranch_scc1 {lb}')
    A.label(lb + '_ok')

class Fill:
    def __init__(self, A, vm): self.A, self.vm, self.q = A, vm, []
    def add(self, text):
        self.q += [('i', y) for y in text.split('\n') if y.strip()]
    def block(self, text): self.q.append(('i', text))
    def mem(self, text, tag): self.q.append(('m', text, tag))
    def need(self, tag): self.q.append(('a', tag))
    def emit(self, n):
        for _ in range(n):
            if not self.q: return
            it = self.q.pop(0)
            if it[0] == 'a':
                assert it[1] not in self.vm.q, 'filler needs ' + it[1]
                continue
            if it[0] == 'i': self.A(it[1])
            else: self.vm.op(it[1], it[2])
    def flush(self): self.emit(len(self.q))

XO, WO = 2, 6
GX, GW = 20, 36
F1 = 44
XA = 76
PT = 84
PSTV = 19
WR, WI, EX = 20, 36, 52
TR, TI = 56, 72
DR, DI = 88, 96
CR, CI = 104, 120
T2 = 136
AFR, AFI, AFN, ACM, AUA = 0, 8, 16, 24, 32

def p1(A, opt, vm):
    A('v_and_b32 v0, 63, v0')
    if opt.get('stamp'): A(f'v_mov_b32 v{PSTV}, 0')
    A('s_sub_u32 s31, s20, 4        ; p')
    ptr_srd(A, 8, P_X, 0, 2048*1024*2)
    ptr_srd(A, 12, P_W1, 0, 1024*3584*2)
    def koffs(t):
        A(f's_add_u32 s36, s27, {t >> 2}\ns_and_b32 s36, s36, 3\ns_lshl_b32 s36, s36, 2')
        A(f's_add_u32 s37, s26, {t & 3}\ns_and_b32 s37, s37, 3\ns_add_u32 s36, s36, s37     ; kappa')
        if t == 0: A('s_mov_b32 s38, s36')
        A(f's_lshl_b32 s37, s36, 7\ns_add_u32 s{40+t}, s37, s33')
        A(f's_mul_i32 s37, s36, 458752\ns_add_u32 s{56+t}, s37, s34')
    A('s_lshl_b32 s33, s24, 11       ; i*2048')
    A('s_mul_i32 s34, s31, 114688\ns_mul_i32 s35, s22, 448\ns_add_u32 s34, s34, s35')
    for t in range(3): koffs(t)
    A('s_lshl_b32 s35, s31, 12\ns_mul_i32 s39, s31, 7168')
    for b in range(3):
        A(f's_add_u32 s{72+3*b}, s35, {b*STG}\ns_add_u32 s{73+3*b}, s39, {b*STG+16384}\ns_add_u32 s{74+3*b}, s39, {b*STG+16384+4096}')
    A('v_lshrrev_b32 v13, 3, v0       ; l>>3\nv_and_b32 v14, 7, v0      ; pos\nv_lshrrev_b32 v15, 4, v0    ; l>>4')
    for q in range(4):
        A(f'v_add_u32 v16, {4*(q & 1)}, v15\nv_xor_b32 v16, v16, v14\nv_lshlrev_b32 v16, 4, v16       ; chunk*16')
        A(f's_lshl_b32 s35, s31, 5\ns_add_u32 s35, s35, {8*q}\nv_add_u32 v17, s35, v13\nv_lshlrev_b32 v17, 15, v17     ; m*32768')
        A(f'v_add_u32 v16, v16, v17\nv_subrev_u32 v{XO+q}, {1024*q}, v16')
    def issue_x(t, fill=None, n=0):
        b = t % 3
        A(f's_mov_b32 m0, s{72+3*b}\ns_nop 0')
        for q in range(4):
            vm.op(f'buffer_load_dwordx4 v{XO+q}, s[8:11], s{40+t} offen offset:{q*1024} lds', f'S{t}')
            if fill: fill.emit(n)
    def issue_w(t, fill=None, n=0):
        b = t % 3
        A(f's_mov_b32 m0, s{73+3*b}\ns_nop 0')
        for q in range(4):
            vm.op(f'buffer_load_dwordx4 v{WO+q}, s[12:15], s{56+t} offen offset:{q*1024} lds', f'S{t}')
            if fill: fill.emit(n)
        A(f's_mov_b32 m0, s{74+3*b}\ns_nop 0')
        for q in range(4, 7):
            vm.op(f'buffer_load_dwordx4 v{WO+q}, s[12:15], s{56+t} offen offset:{(q-4)*1024} lds', f'S{t}')
            if fill: fill.emit(n)
    issue_x(0)
    for q in range(7):
        A(f'v_add_u32 v13, {64*q}, v0\nv_mul_u32_u24 v14, 2341, v13\nv_lshrrev_b32 v14, 16, v14      ; row')
        A('v_mul_u32_u24 v15, 28, v14\nv_sub_u32 v15, v13, v15        ; pos')
        A('v_lshrrev_b32 v16, 3, v14\nv_lshrrev_b32 v17, 1, v15\nv_xor_b32 v17, v17, v16\nv_lshlrev_b32 v17, 5, v17')
        A('v_and_b32 v15, 1, v15\nv_lshl_add_u32 v17, v15, 4, v17')
        A('v_mul_u32_u24 v14, 7168, v14\nv_add_u32 v17, v17, v14')
        A(f'v_subrev_u32 v{WO+q}, {1024*(q & 3)}, v17')
    issue_w(0); issue_x(1); issue_w(1); issue_x(2); issue_w(2)
    stamp(A, opt, 0, PSTV)
    A('s_lshl_b32 s35, s22, 3\ns_lshl_b32 s39, s31, 1\ns_add_u32 s39, s35, s39     ; m0 = 8j + 2p')
    A('s_lshl_b32 s35, s39, 15\ns_lshl_b32 s36, s24, 11\ns_add_u32 s35, s35, s36')
    A('v_lshlrev_b32 v13, 5, v0       ; lane*32 B')
    vm.op(f'buffer_load_dwordx4 v[{GX}:{GX+3}], v13, s[8:11], s35 offen', 'G')
    vm.op(f'buffer_load_dwordx4 v[{GX+4}:{GX+7}], v13, s[8:11], s35 offen offset:16', 'G')
    A('s_add_u32 s35, s35, 32768')
    vm.op(f'buffer_load_dwordx4 v[{GX+8}:{GX+11}], v13, s[8:11], s35 offen', 'G')
    vm.op(f'buffer_load_dwordx4 v[{GX+12}:{GX+15}], v13, s[8:11], s35 offen offset:16', 'G')
    ptr_srd(A, 16, P_GW, 0, 2048)
    vm.op(f'buffer_load_dwordx4 v[{GW}:{GW+3}], v13, s[16:19], 0 offen', 'G')
    vm.op(f'buffer_load_dwordx4 v[{GW+4}:{GW+7}], v13, s[16:19], 0 offen offset:16', 'G')
    A('s_cmp_lg_u32 s20, 4\ns_cbranch_scc1 P1_nz')
    ptr_srd(A, 16, P_WS, WS_FLAG, 32768)
    A('s_lshl_b32 s35, s24, 4\ns_add_u32 s35, s35, s22\ns_lshl_b32 s35, s35, 7\nv_lshlrev_b32 v14, 2, v0\nv_mov_b32 v15, 0')
    A('s_mov_b32 exec_lo, -1\ns_mov_b32 exec_hi, 0\nbuffer_store_dword v15, v14, s[16:19], s35 offen sc0 sc1\ns_mov_b64 exec, -1')
    A(f'v_mov_b32 v14, {CNT}\nds_write_b32 v14, v15\nds_write_b32 v14, v15 offset:4\nds_write_b32 v14, v15 offset:8')
    A('s_branch P1_nz2')
    A.label('P1_nz')
    A(f'buffer_load_dword v1, v13, s[16:19], 0 offen')
    A.label('P1_nz2')
    for t in range(3, 16): koffs(t)
    A(f'v_lshrrev_b32 v{PT}, 4, v0      ; g4\nv_bfe_u32 v{PT+1}, v0, 2, 2       ; r\nv_and_b32 v{PT+2}, 3, v0      ; c')
    A(f'v_lshrrev_b32 v{PT+3}, 1, v{PT}\nv_lshlrev_b32 v{PT+3}, 4, v{PT+3}\nv_and_b32 v{PT+4}, 1, v{PT}\nv_lshl_add_u32 v{PT+3}, v{PT+4}, 3, v{PT+3}   ; 16(g4>>1)+8(g4&1)')
    A(f'v_and_b32 v{PT+5}, 1, v{PT+1}\nv_lshrrev_b32 v{PT+6}, 1, v{PT+1}\nv_lshl_add_u32 v{PT+5}, v{PT+6}, 2, v{PT+5}     ; [0,1,4,5][r]')
    A(f'v_add_u32 v{PT+5}, v{PT+3}, v{PT+5}')
    A(f'v_lshlrev_b32 v{PT+7}, 2, v{PT+4}\nv_lshl_add_u32 v{PT+7}, v{PT+6}, 1, v{PT+7}     ; f for #0')
    A(f'v_lshrrev_b32 v{PT+8}, 1, v{PT+2}\nv_and_b32 v{PT+9}, 1, v{PT+2}')
    for dt in range(4):
        for h in range(2):
            A(f'v_add_u32 v{PT+10}, {2*dt}, v{PT+8}\nv_add_u32 v{PT+11}, {h}, v{PT+7}\nv_xor_b32 v{PT+10}, v{PT+10}, v{PT+11}\nv_lshlrev_b32 v{PT+10}, 4, v{PT+10}')
            A(f'v_lshl_add_u32 v{PT+10}, v{PT+9}, 3, v{PT+10}\nv_add_u32 v{PT+11}, {2*h}, v{PT+5}\nv_lshl_add_u32 v{XA+dt*2+h}, v{PT+11}, 7, v{PT+10}')
    vm.wait('S0', ' lgkmcnt(0)')
    A('s_barrier        ; Ba')
    stamp(A, opt, 1, PSTV)
    for dt in range(4):
        for ks in range(4):
            r = dt*16 + ks*4
            A(f'ds_read_b64_tr_b16 a[{r}:{r+1}], v{XA+dt*2} offset:{ks*4096}')
            A(f'ds_read_b64_tr_b16 a[{r+2}:{r+3}], v{XA+dt*2+1} offset:{ks*4096}')
    F = Fill(A, vm)
    for i in range(32): F.add(f'v_accvgpr_write_b32 a{64+i}, 0')
    F.add(f'v_and_b32 v{PT+1}, 15, v0\nv_cvt_f32_u32 v{PT+3}, v{PT+3}')
    for u in range(2):
        F.add(f's_lshl_b32 s35, s31, 5\ns_add_u32 s35, s35, {16*u}\nv_add_u32 v{PT+4}, s35, v{PT+1}')
        F.add(f'v_lshrrev_b32 v{PT+5}, 1, v{PT+4}\nv_and_b32 v{PT+6}, 1, v{PT+4}\nv_cvt_f32_u32 v{PT+5}, v{PT+5}\nv_cvt_f32_u32 v{PT+6}, v{PT+6}')
        F.add(f'v_mul_f32 v{PT+6}, {f32hex(0.25)}, v{PT+6}\nv_cmp_eq_u32 vcc, 1, v{PT+4}\nv_mov_b32 v{PT+7}, 0x42800000\nv_mov_b32 v{PT+2}, 0')
        F.add(f'v_cndmask_b32 v{PT+5}, v{PT+5}, v{PT+7}, vcc\nv_cndmask_b32 v{PT+6}, v{PT+6}, v{PT+2}, vcc')
        F.add(f'v_mul_f32 v{PT+5}, {f32hex(1/128)}, v{PT+5}\nv_fma_f32 v{PT+7}, v{PT+5}, v{PT+3}, v{PT+6}')
        for ks in range(4):
            for i8 in range(8):
                cst = 32*ks + [0, 1, 4, 5][i8 & 3] + 2*(i8 >> 2)
                F.add(f'v_fmamk_f32 v{PT+8+i8}, v{PT+5}, {f32hex(float(cst))}, v{PT+7}')
            for i8 in range(8): F.add(f'v_cos_f32 v{PT+8+i8}, v{PT+8+i8}')
            F.add('s_nop 0')
            for i2 in range(4): F.add(f'v_cvt_pk_bf16_f32 v{F1+u*16+ks*4+i2}, v{PT+8+2*i2}, v{PT+9+2*i2}')
    F.add('s_nop 1')
    for ks in range(4):
        for u in range(2):
            for dt in range(4):
                acc = 64 + (u*4+dt)*4
                F.add(f'v_mfma_f32_16x16x32_bf16 a[{acc}:{acc+3}], a[{dt*16+ks*4}:{dt*16+ks*4+3}], v[{F1+u*16+ks*4}:{F1+u*16+ks*4+3}], a[{acc}:{acc+3}]')
    F.add(f's_add_u32 s16, s{P_WS}, {WS_U}\ns_addc_u32 s17, s{P_WS+1}, 0\ns_mov_b32 s18, {4 << 20}\ns_mov_b32 s19, 0x20000')
    F.add(f'v_and_b32 v13, 1, v{PT}\nv_lshlrev_b32 v13, 4, v13\nv_lshrrev_b32 v14, 1, v{PT}\nv_lshl_add_u32 v13, v14, 3, v13\nv_lshlrev_b32 v13, 1, v13\nv_lshl_add_u32 v13, v{PT+1}, 11, v13')
    F.add('s_lshl_b32 s81, s24, 7\ns_lshl_b32 s35, s31, 5\ns_add_u32 s81, s81, s35\ns_lshl_b32 s81, s81, 11\ns_lshl_b32 s35, s38, 7\ns_add_u32 s81, s81, s35')
    F.add('s_nop 3')
    for u in range(2):
        for pr in range(2):
            ra = 64 + (u*4+2*pr)*4; Tq = F1 + (u*2+pr)*4
            for k in range(8): F.add(f'v_accvgpr_read_b32 v{PT+8+k}, a{ra+k}')
            F.add(f'v_cvt_pk_bf16_f32 v{Tq}, v{PT+8}, v{PT+9}\nv_cvt_pk_bf16_f32 v{Tq+1}, v{PT+10}, v{PT+11}')
            F.add(f'v_cvt_pk_bf16_f32 v{Tq+2}, v{PT+12}, v{PT+13}\nv_cvt_pk_bf16_f32 v{Tq+3}, v{PT+14}, v{PT+15}')
            F.add('s_nop 1')
            F.add(f'v_permlane16_swap_b32 v{Tq}, v{Tq+2}\nv_permlane16_swap_b32 v{Tq+1}, v{Tq+3}')
            F.add(f's_add_u32 s82, s81, {u*16*2048}')
            F.mem(f'buffer_store_dwordx4 v[{Tq}:{Tq+3}], v13, s[16:19], s82 offen offset:{pr*64} sc0 sc1', 'U')
    F.need('G')
    for row in range(2):
        X = GX + row*8; r = 14 + row
        for k in range(8):
            F.add(f'v_lshlrev_b32 v{PT}, 16, v{X+k}\nv_and_b32 v{PT+1}, 0xffff0000, v{X+k}')
            F.add(f'v_lshlrev_b32 v{PT+2}, 16, v{GW+k}\nv_and_b32 v{PT+3}, 0xffff0000, v{GW+k}')
            F.add(f'v_mul_f32 v{PT}, v{PT}, v{PT+2}\nv_mul_f32 v{PT+1}, v{PT+1}, v{PT+3}')
            F.add(f'v_cvt_pk_bf16_f32 v{PT}, v{PT}, v{PT+1}')
            F.add(f'v_lshlrev_b32 v{PT+2}, 16, v{PT}\nv_and_b32 v{PT+3}, 0xffff0000, v{PT}')
            if k == 0: F.add(f'v_add_f32 v{r}, v{PT+2}, v{PT+3}')
            else: F.add(f'v_add_f32 v{r}, v{r}, v{PT+2}\nv_add_f32 v{r}, v{r}, v{PT+3}')
    for row in range(2):
        r = 14 + row
        for sh in (1, 2, 4, 8):
            F.block(f's_nop 1\nv_add_f32_dpp v{r}, v{r}, v{r} row_shr:{sh} row_mask:0xf bank_mask:0xf bound_ctrl:0')
        F.block(f's_nop 1\nv_add_f32_dpp v{r}, v{r}, v{r} row_bcast:15 row_mask:0xa bank_mask:0xf')
        F.block(f's_nop 1\nv_add_f32_dpp v{r}, v{r}, v{r} row_bcast:31 row_mask:0xc bank_mask:0xf')
        F.block(f's_nop 1\nv_readlane_b32 s{82+row}, v{r}, 63')
    F.block(f's_nop 3\nv_mov_b32 v{PT}, s82\nv_mov_b32 v{PT+1}, s83\nv_cmp_eq_u32 vcc, 1, v0\ns_nop 1\nv_cndmask_b32 v{PT}, v{PT}, v{PT+1}, vcc')
    F.add(f'v_cvt_pk_bf16_f32 v{PT}, v{PT}, v{PT}\nv_and_b32 v{PT}, 0xffff0000, v{PT}')
    F.block(f'v_mul_f32 v{PT+1}, {NL2E}, v{PT}\nv_exp_f32 v{PT+1}, v{PT+1}\ns_nop 0\nv_add_f32 v{PT+1}, 1.0, v{PT+1}\nv_rcp_f32 v{PT+1}, v{PT+1}\ns_nop 0')
    F.add(f'v_cvt_pk_bf16_f32 v{PT+1}, v{PT+1}, v{PT+1}\nv_and_b32 v{PT+1}, 0xffff0000, v{PT+1}')
    F.add(f'v_sub_f32 v{PT+2}, 1.0, v{PT+1}\nv_cvt_pk_bf16_f32 v{PT+2}, v{PT+2}, v{PT+2}\nv_and_b32 v{PT+2}, 0xffff0000, v{PT+2}')
    F.add(f's_add_u32 s16, s{P_WS}, {WS_G}\ns_addc_u32 s17, s{P_WS+1}, 0\ns_mov_b32 s18, 16384\ns_mov_b32 s19, 0x20000')
    F.add('s_lshl_b32 s81, s24, 7\ns_add_u32 s81, s81, s39\ns_lshl_b32 s81, s81, 2\ns_add_u32 s82, s81, 8192')
    F.add(f'v_lshlrev_b32 v{PT+3}, 2, v0\nv_mov_b32 v{PT+4}, 0x100000\nv_cmp_gt_u32 vcc, 2, v0\ns_nop 1\nv_cndmask_b32 v{PT+3}, v{PT+4}, v{PT+3}, vcc')
    F.mem(f'buffer_store_dword v{PT+2}, v{PT+3}, s[16:19], s81 offen sc0 sc1', 'GS')
    F.mem(f'buffer_store_dword v{PT+1}, v{PT+3}, s[16:19], s82 offen sc0 sc1', 'GS')
    n_early = len(F.q)
    A('s_waitcnt lgkmcnt(0)')
    vm.wait('S1')
    A('s_barrier        ; X0')
    signalled = False
    for s in range(0, 13):
        nf = opt.get('nf', 12)
        if s == 12:
            ptr_srd(A, 16, P_DBG, 0, 256)
            A('v_mov_b32 v1, 0')
            vm.op('buffer_load_dword v1, v1, s[16:19], 0 offen sc0 sc1', 'CA')
        issue_x(s+3, F, nf); issue_w(s+3, F, nf)
        if s == 0: pass
        if 'G' in vm.q and s >= 1: pass
        vm.wait(f'S{s+2}')
        A('s_barrier')
        if not F.q and not signalled and 'GS' not in vm.q and 'U' not in vm.q and 'Z' not in vm.q:
            signalled = True
            sig_step = s
            A('s_cmp_lg_u32 s20, 4\ns_cbranch_scc1 P1_nosig')
            ptr_srd(A, 16, P_DBG, 0, 256)
            A('v_mov_b32 v13, 0\nv_mov_b32 v14, 1\ns_mov_b64 exec, 1\nbuffer_atomic_add v14, v13, s[16:19], 0 offen sc1\ns_mov_b64 exec, -1')
            A('s_branch P1_sig2')
            A.label('P1_nosig')
            ptr_srd(A, 16, P_DBG, 0, 256)
            A('v_mov_b32 v13, 0x1000\nbuffer_load_dword v1, v13, s[16:19], 0 offen')
            A.label('P1_sig2')
            pass2_consts(F); pass2_pre(F)
    assert signalled, 'early work did not finish in time'
    print('mega: early fillers', n_early, 'signalled after step', sig_step, 'left', len(F.q))
    F.flush()
    stamp(A, opt, 2, PSTV)

def pass2_consts(F):
    T = T2
    F.add('s_and_b32 s81, s2, 127\ns_sub_u32 s82, 128, s81')
    F.block('s_cmp_gt_u32 s81, 64\ns_cselect_b32 s82, s82, s81\ns_cselect_b32 s83, 0xbf800000, 1.0')
    F.add('s_lshl_b32 s84, s82, 1\ns_mov_b32 s85, 2048')
    F.block('s_cmp_eq_u32 s82, 64\ns_cselect_b32 s84, 1, s84')
    F.block('s_and_b32 s81, s82, 63\ns_cmp_eq_u32 s81, 0\ns_cselect_b32 s85, 0, s85\ns_cselect_b32 s83, 0, s83')
    F.add(f'v_and_b32 v{T}, 31, v0\nv_lshrrev_b32 v{T+1}, 5, v0\nv_cvt_f32_u32 v{T}, v{T}\nv_cvt_f32_u32 v{T+1}, v{T+1}')
    F.add(f'v_mul_f32 v{T+2}, {f32hex(1/32)}, v{T}\nv_mul_f32 v{T+3}, 4.0, v{T+1}\nv_mul_f32 v{T+3}, v{T+3}, v{T+2}')
    for dst, ph in ((AFR, 0.0), (AFI, 0.25), (AFN, -0.25)):
        F.add(f'v_add_f32 v{T+4}, {f32hex(ph)}, v{T+3}')
        for ks in range(2):
            for i in range(8):
                pc = 16*ks + 8*(i >> 2) + (i & 3)
                F.add(f'v_fmamk_f32 v{T+8+i}, v{T+2}, {f32hex(float(pc))}, v{T+4}')
            for i in range(8): F.add(f'v_cos_f32 v{T+8+i}, v{T+8+i}')
            F.add('s_nop 0')
            for i in range(4): F.add(f'v_cvt_pk_bf16_f32 v{T+8+i}, v{T+8+2*i}, v{T+9+2*i}')
            for i in range(4): F.add(f'v_accvgpr_write_b32 a{dst+ks*4+i}, v{T+8+i}')
    F.add(f'v_mul_f32 v{T+2}, {f32hex(1/1024)}, v{T}\nv_mul_f32 v{T+3}, 4.0, v{T+1}\nv_mul_f32 v{T+3}, v{T+3}, v{T+2}\nv_add_f32 v{T+4}, {f32hex(0.25)}, v{T+3}')
    for rho in range(16):
        rc = 8*(rho >> 2) + (rho & 3)
        F.add(f'v_fmamk_f32 v{TR+rho}, v{T+2}, {f32hex(float(rc))}, v{T+3}\nv_fmamk_f32 v{TI+rho}, v{T+2}, {f32hex(float(rc))}, v{T+4}')
    for rho in range(16): F.add(f'v_cos_f32 v{TR+rho}, v{TR+rho}\nv_cos_f32 v{TI+rho}, v{TI+rho}')
    F.add(f'v_and_b32 v{T}, 15, v0\nv_lshrrev_b32 v{T+1}, 4, v0')
    F.add(f'v_lshrrev_b32 v{T+2}, 1, v{T}\nv_and_b32 v{T+2}, 3, v{T+2}\nv_lshlrev_b32 v{T+3}, 9, v{T+2}\nv_add_u32 v{T+3}, s2, v{T+3}')
    F.add(f'v_and_b32 v{T+4}, 1, v{T}\nv_cvt_f32_u32 v{T+4}, v{T+4}\nv_mul_f32 v{T+4}, {f32hex(0.25)}, v{T+4}')
    F.block(f's_cmp_eq_u32 s2, 0\ns_cbranch_scc0 P2_gen_cols\n'
            f'v_mov_b32 v{T+5}, 256\nv_cmp_eq_u32 vcc, 2, v{T+2}\ns_nop 1\nv_cndmask_b32 v{T+3}, v{T+3}, v{T+5}, vcc\n'
            f'v_mov_b32 v{T+5}, 768\nv_cmp_eq_u32 vcc, 3, v{T+2}\ns_nop 1\nv_cndmask_b32 v{T+3}, v{T+3}, v{T+5}, vcc\n'
            f'v_mov_b32 v{T+5}, 1024\nv_mov_b32 v{T+6}, 0\nv_cmp_eq_u32 vcc, 1, v{T}\ns_nop 1\nv_cndmask_b32 v{T+3}, v{T+3}, v{T+5}, vcc\nv_cndmask_b32 v{T+4}, v{T+4}, v{T+6}, vcc\n'
            f'P2_gen_cols:')
    F.block(f'v_cmp_gt_u32 vcc, 8, v{T}\nv_mov_b32 v{T+5}, 0\nv_mov_b32 v{T+6}, 1.0\nv_mov_b32 v{T+7}, s83\n'
            f'v_cndmask_b32 v{T+6}, v{T+5}, v{T+6}, vcc\nv_cndmask_b32 v{T+7}, v{T+5}, v{T+7}, vcc')
    F.add(f'v_lshlrev_b32 v{T+5}, 1, v{T+1}')
    for i in range(8):
        rc = 8*(i >> 2) + ((i & 3) >> 1); c = i & 1
        F.add(f'v_add_u32 v{T+8+i}, {rc}, v{T+5}\nv_mul_u32_u24 v{T+8+i}, v{T+8+i}, v{T+3}\nv_and_b32 v{T+8+i}, 2047, v{T+8+i}')
        F.add(f'v_cvt_f32_u32 v{T+8+i}, v{T+8+i}\nv_fmamk_f32 v{T+8+i}, v{T+8+i}, {f32hex(1/2048)}, v{T+4}')
        if c: F.add(f'v_add_f32 v{T+8+i}, {f32hex(-0.25)}, v{T+8+i}')
    for i in range(8): F.add(f'v_cos_f32 v{T+8+i}, v{T+8+i}')
    F.add('s_nop 0')
    for i in range(8): F.add(f'v_mul_f32 v{T+8+i}, v{T+8+i}, v{T+6+(i & 1)}')
    for i in range(4): F.add(f'v_cvt_pk_bf16_f32 v{T+8+i}, v{T+8+2*i}, v{T+9+2*i}')
    for i in range(4): F.add(f'v_accvgpr_write_b32 a{ACM+i}, v{T+8+i}')

def pass2_pre(F):
    T = T2
    for k in range(36): F.add(f'v_mov_b32 v{WR+k}, 0')
    F.add('s_lshl_b32 s35, s31, 9\ns_add_u32 s33, s2, s35')
    F.block('s_cmp_eq_u32 s2, 0\ns_cbranch_scc0 P2_fgen\ns_cmp_eq_u32 s31, 2\ns_cselect_b32 s33, 256, s33\ns_cmp_eq_u32 s31, 3\ns_cselect_b32 s33, 768, s33\nP2_fgen:')
    F.add('s_sub_u32 s34, 2048, s33\ns_and_b32 s34, s34, 2047\ns_mul_i32 s33, s33, 1026\ns_mul_i32 s34, s34, 1026')
    F.add('v_and_b32 v13, 31, v0\nv_lshrrev_b32 v14, 5, v0\nv_lshl_add_u32 v15, v14, 7, v13\nv_lshlrev_b32 v16, 1, v15')
    F.add('v_sub_u32 v17, 160, v15\nv_lshlrev_b32 v17, 1, v17\nv_mov_b32 v18, 0')
    F.add(f'v_lshrrev_b32 v{T}, 5, v0\nv_and_b32 v{T+1}, 31, v0\nv_mul_lo_u32 v{T+2}, v{T}, s85')
    for qq in range(4):
        F.add(f'v_add_u32 v{T+3}, {2*qq}, v{T}\nv_lshrrev_b32 v{T+4}, 1, v{T+1}\nv_xor_b32 v{T+4}, v{T+4}, v{T+3}\nv_lshlrev_b32 v{T+4}, 5, v{T+4}')
        F.add(f'v_and_b32 v{T+5}, 1, v{T+1}\nv_lshl_add_u32 v{T+4}, v{T+5}, 4, v{T+4}\nv_add_u32 v{T+4}, v{T+4}, v{T+2}')
        F.add(f'v_subrev_u32 v{T+8+qq}, {1024*qq}, v{T+4}')
    F.add('s_lshl_b32 s36, s84, 11\ns_lshl_b32 s37, s31, 9\ns_add_u32 s36, s36, s37')
    F.add(f's_lshl_b32 s37, s31, 14\ns_add_u32 s37, s37, {SB}')

def p2(A, opt, vm):
    T = T2
    ptr_srd(A, 12, P_WR, 0, 2048*513*2); ptr_srd(A, 16, P_WI, 0, 2048*513*2)
    ptr_srd(A, 8, P_WS, WS_U, 4 << 20)
    def wloads(wr, wi, ex, pfx, sf, sm, tag):
        for rho in range(16):
            kk = 8*(rho >> 2) + (rho & 3)
            if rho < 8:
                vm.op(f'buffer_load_short_d16_hi {pfx}{wr+rho}, v16, s[12:15], {sf} offen offset:{64*kk}', tag)
                vm.op(f'buffer_load_short_d16_hi {pfx}{wi+rho}, v16, s[16:19], {sf} offen offset:{64*kk}', tag)
            else:
                vm.op(f'buffer_load_short_d16_hi {pfx}{wr+rho}, v17, s[12:15], {sm} offen offset:{64*(27-kk)}', tag)
                vm.op(f'buffer_load_short_d16_hi {pfx}{wi+rho}, v17, s[16:19], {sm} offen offset:{64*(27-kk)}', tag)
        vm.op(f'buffer_load_short_d16_hi {pfx}{ex}, v18, s[12:15], {sm} offen', tag)
        vm.op(f'buffer_load_short_d16_hi {pfx}{ex+1}, v18, s[16:19], {sm} offen', tag)
        vm.op(f'buffer_load_short_d16_hi {pfx}{ex+2}, v18, s[12:15], {sf} offen offset:1024', tag)
        vm.op(f'buffer_load_short_d16_hi {pfx}{ex+3}, v18, s[16:19], {sf} offen offset:1024', tag)
    vm.wait('S15')
    A('s_barrier')
    A('v_readfirstlane_b32 s35, v1\ns_cmp_eq_u32 s35, 256\ns_cbranch_scc1 P2_polla_done')
    ptr_srd(A, 60, P_DBG, 0, 256)
    A('v_mov_b32 v1, 0')
    poll(A, 'P2_polla', 60, 1, 0, 256, T+20, None)
    A.label('P2_polla_done')
    stamp(A, opt, 3, PSTV)
    for qb in range(4):
        A(f's_add_u32 m0, s37, {qb*4096}')
        for qq in range(4):
            q = qb*4 + qq
            A(f's_add_u32 s39, s36, {q*262144}')
            vm.op(f'buffer_load_dwordx4 v{T+8+qq}, s[8:11], s39 offen offset:{qq*1024} sc1 lds', 'US')
    wloads(WR, WI, EX, 'v', 's33', 's34', 'W')
    A('s_barrier       ; X15')
    stamp(A, opt, 4, PSTV)
    AD = T + 12
    A(f'v_lshrrev_b32 v{T}, 4, v0\nv_bfe_u32 v{T+1}, v0, 2, 2\nv_and_b32 v{T+2}, 3, v0')
    A(f'v_lshl_add_u32 v{T+3}, v{T}, 2, v{T+1}      ; row = 4 g4 + r4\nv_and_b32 v{T+4}, 7, v{T+3}')
    A(f's_lshl_b32 s37, s31, 14\ns_add_u32 s37, s37, {SB}\nv_lshlrev_b32 v{T+5}, 9, v{T+3}\nv_lshl_add_u32 v{T+5}, v{T+2}, 3, v{T+5}\nv_add_u32 v{T+5}, s37, v{T+5}')
    for b in range(8):
        A(f'v_xor_b32 v{T+6}, {b}, v{T+4}\nv_lshl_add_u32 v{AD+b}, v{T+6}, 5, v{T+5}')
    A(f'v_and_b32 v{T+6}, 15, v0\nv_mul_u32_u24 v{T+6}, {XROW}, v{T+6}\nv_lshl_add_u32 v{T+6}, v{T}, 3, v{T+6}')
    A(f's_lshl_b32 s37, s31, 9\ns_add_u32 s37, s37, {XB}\nv_add_u32 v{T+7}, s37, v{T+6}')
    vm.wait('US')
    for dt in range(16):
        r = AUA + dt*4
        A(f'ds_read_b64_tr_b16 a[{r}:{r+1}], v{AD+(dt & 7)} offset:{(dt >> 3)*256}')
        A(f'ds_read_b64_tr_b16 a[{r+2}:{r+3}], v{AD+(dt & 7)} offset:{(dt >> 3)*256 + 8192}')
    A('s_waitcnt lgkmcnt(0)')
    DA = CR
    for blk in range(4):
        for t in range(4):
            dt = blk*4 + t; r = AUA + dt*4; d = DA + t*4
            A(f'v_mfma_f32_16x16x32_bf16 v[{d}:{d+3}], a[{r}:{r+3}], a[{ACM}:{ACM+3}], 0')
        A('s_nop 7')
        for t in range(4):
            d = DA + t*4
            A(f'v_cvt_pk_bf16_f32 v{d}, v{d}, v{d+1}\nv_cvt_pk_bf16_f32 v{d+1}, v{d+2}, v{d+3}')
        A('s_mov_b32 exec_lo, 0x00ff00ff\ns_mov_b32 exec_hi, 0x00ff00ff')
        for t in range(4):
            dt = blk*4 + t; d = DA + t*4
            A(f'ds_write_b64 v{T+7}, v[{d}:{d+1}] offset:{dt*32}')
        A('s_mov_b64 exec, -1')
    A('s_or_b32 s35, s2, s31\ns_cmp_eq_u32 s35, 0\ns_cselect_b32 s87, 1, 0')
    A('s_cbranch_scc0 P2_now1')
    for k in range(36): A(f'v_accvgpr_write_b32 a{32+k}, 0')
    A(f's_mov_b32 s35, {1024*1026}')
    sv = len(vm.q)
    wloads(32, 48, 64, 'a', 's35', 's35', 'W1')
    vm.q = vm.q[:sv]
    A.label('P2_now1')
    pbar(A, 1, T)
    stamp(A, opt, 5, PSTV)
    A(f'v_lshrrev_b32 v{T}, 4, v0      ; G\nv_lshrrev_b32 v{T+1}, 1, v{T}     ; h\nv_and_b32 v{T+2}, 1, v{T}      ; half')
    A(f'v_bfe_u32 v{T+3}, v0, 2, 2\nv_and_b32 v{T+4}, 3, v0')
    A(f'v_lshl_add_u32 v{T+3}, v{T+1}, 2, v{T+3}      ; 4h + r4\nv_lshlrev_b32 v{T+3}, 6, v{T+3}')
    A(f'v_lshl_add_u32 v{T+3}, v{T+2}, 5, v{T+3}\nv_lshl_add_u32 v{T+3}, v{T+4}, 3, v{T+3}')
    A(f's_mul_i32 s37, s31, {2*XROW}\ns_add_u32 s37, s37, {XB}\nv_add_u32 v{T+3}, s37, v{T+3}')
    for c, D in ((0, DR), (1, DI)):
        for ks in range(2):
            A(f'ds_read_b64_tr_b16 v[{D+ks*4}:{D+ks*4+1}], v{T+3} offset:{c*XROW + ks*1024}')
            A(f'ds_read_b64_tr_b16 v[{D+ks*4+2}:{D+ks*4+3}], v{T+3} offset:{c*XROW + ks*1024 + 512}')
    vm.wait_all()
    A('s_mov_b64 exec, 1')
    for rho, e in ((0, EX), (8, EX+2)):
        A(f'v_add_f32 v{WR+rho}, v{WR+rho}, v{e}\nv_sub_f32 v{WI+rho}, v{WI+rho}, v{e+1}')
        A(f'v_mul_f32 v{WR+rho}, 0.5, v{WR+rho}\nv_mul_f32 v{WI+rho}, 0.5, v{WI+rho}')
    A('s_mov_b64 exec, -1')
    A('s_waitcnt lgkmcnt(0)')
    def stage(data_is_A, inv):
        def mm(acc, d, f, first):
            for ks in range(2):
                src = '0' if (first and ks == 0) else f'v[{acc}:{acc+15}]'
                if data_is_A: A(f'v_mfma_f32_32x32x16_bf16 v[{acc}:{acc+15}], v[{d+ks*4}:{d+ks*4+3}], a[{f+ks*4}:{f+ks*4+3}], {src}')
                else: A(f'v_mfma_f32_32x32x16_bf16 v[{acc}:{acc+15}], a[{f+ks*4}:{f+ks*4+3}], v[{d+ks*4}:{d+ks*4+3}], {src}')
        mm(CR, DR, AFR, True); mm(CI, DI, AFR, True)
        if not inv: mm(CR, DI, AFN, False); mm(CI, DR, AFI, False)
        else: mm(CR, DI, AFI, False); mm(CI, DR, AFN, False)
        A('s_nop 15')
    def cmul(wr, wi, conj_lo, conj_hi):
        for h0 in (0, 8):
            cj = conj_lo if h0 == 0 else conj_hi
            for k in range(8): A(f'v_mul_f32 v{T+k}, v{CR+h0+k}, v{wi+h0+k}')
            for k in range(8): A(f'v_mul_f32 v{CR+h0+k}, v{CR+h0+k}, v{wr+h0+k}')
            for k in range(8): A(f'v_fma_f32 v{CR+h0+k}, {"" if cj else "-"}v{CI+h0+k}, v{wi+h0+k}, v{CR+h0+k}')
            for k in range(8): A(f'v_fma_f32 v{CI+h0+k}, v{CI+h0+k}, v{wr+h0+k}, {"-" if cj else ""}v{T+k}')
    def pack():
        for i in range(8):
            A(f'v_cvt_pk_bf16_f32 v{DR+i}, v{CR+2*i}, v{CR+2*i+1}')
            A(f'v_cvt_pk_bf16_f32 v{DI+i}, v{CI+2*i}, v{CI+2*i+1}')
        A('s_nop 1')
    stage(True, False); cmul(TR, TI, False, False); pack()
    stage(False, False)
    A('s_cmp_eq_u32 s87, 1\ns_cbranch_scc1 P2_special_w')
    cmul(WR, WI, False, True)
    A.label('P2_w_done')
    pack()
    stage(True, True); cmul(TR, TI, True, True); pack()
    stage(True, True)
    stamp(A, opt, 6, PSTV)
    A(f'v_and_b32 v{T}, 31, v0\nv_lshrrev_b32 v{T+1}, 5, v0\nv_and_b32 v{T+2}, 7, v{T}\nv_xor_b32 v{T+2}, v{T+2}, v{T+1}')
    A(f'v_lshlrev_b32 v{T+2}, 4, v{T+2}\nv_lshl_add_u32 v{T+2}, v{T}, 7, v{T+2}')
    A(f's_lshl_b32 s37, s31, 13\ns_add_u32 s37, s37, {SB}\nv_add_u32 v{T+2}, s37, v{T+2}')
    for q in range(4): A(f'v_xor_b32 v{T+3+q}, {q*32}, v{T+2}')
    for q in range(4):
        A(f'ds_write_b128 v{T+3+q}, v[{CR+4*q}:{CR+4*q+3}]')
        A(f'ds_write_b128 v{T+3+q}, v[{CI+4*q}:{CI+4*q+3}] offset:4096')
    A(f's_mov_b32 s86, {f32hex(2.0**-20)}')
    TW = T + 10
    for r in range(1, 4):
        A(f's_mul_i32 s35, s2, {r}\ns_and_b32 s35, s35, 2047\nv_cvt_f32_u32 v{TW+2*(r-1)}, s35')
        A(f'v_mul_f32 v{TW+2*(r-1)}, {f32hex(1/2048)}, v{TW+2*(r-1)}\nv_add_f32 v{TW+2*(r-1)+1}, {f32hex(-0.25)}, v{TW+2*(r-1)}')
    for k in range(6): A(f'v_cos_f32 v{TW+k}, v{TW+k}')
    A('s_nop 0')
    for k in range(6): A(f'v_mul_f32 v{TW+k}, s86, v{TW+k}')
    pbar(A, 2, T)
    A(f'v_lshrrev_b32 v{T}, 3, v0\nv_and_b32 v{T+1}, 7, v0\nv_xor_b32 v{T+1}, v{T+1}, v{T}\nv_lshlrev_b32 v{T+1}, 4, v{T+1}')
    A(f'v_lshl_add_u32 v{T+1}, v{T}, 7, v{T+1}\ns_lshl_b32 s35, s31, 10\ns_add_u32 s35, s35, {SB}\nv_add_u32 v{T+1}, s35, v{T+1}')
    V = CR
    for j in range(4):
        for c in range(2):
            A(f'ds_read_b128 v[{V+(j*2+c)*4}:{V+(j*2+c)*4+3}], v{T+1} offset:{(j*2+c)*4096}')
    ptr_srd(A, 8, P_WS, WS_T, 4 << 20)
    A('s_lshl_b32 s36, s2, 12\ns_lshl_b32 s35, s31, 9\ns_add_u32 s36, s36, s35')
    A(f'v_lshlrev_b32 v{T+2}, 3, v0      ; lane*4 d*2B')
    A('s_waitcnt lgkmcnt(0)')
    pbar(A, 3, T+4)
    return dict(V=V, TW=TW, cmul=cmul)

def p2_finish(A, opt, vm, st):
    T = T2; V, TW = st['V'], st['TW']
    S = WR
    O = T + 4
    O = T + 16
    O8, O9 = T+4, T+5
    A('s_cmp_eq_u32 s2, 0\ns_cbranch_scc1 P2_special_fin')
    for x in range(4):
        v = lambda j, c: V + (j*2+c)*4 + x
        A(f'v_add_f32 v{O}, v{v(0,0)}, v{v(2,0)}\nv_add_f32 v{O+1}, v{v(0,1)}, v{v(2,1)}')
        A(f'v_sub_f32 v{O+2}, v{v(0,0)}, v{v(2,0)}\nv_sub_f32 v{O+3}, v{v(0,1)}, v{v(2,1)}')
        A(f'v_add_f32 v{O+4}, v{v(1,0)}, v{v(3,0)}\nv_add_f32 v{O+5}, v{v(1,1)}, v{v(3,1)}')
        A(f'v_sub_f32 v{O+6}, v{v(1,0)}, v{v(3,0)}\nv_sub_f32 v{O+7}, v{v(1,1)}, v{v(3,1)}')
        s = lambda r, c: S + (r*2+c)*4 + x
        A(f'v_add_f32 v{s(0,0)}, v{O}, v{O+4}\nv_add_f32 v{s(0,1)}, v{O+1}, v{O+5}')
        A(f'v_mul_f32 v{s(0,0)}, s86, v{s(0,0)}\nv_mul_f32 v{s(0,1)}, s86, v{s(0,1)}')
        for r, (re_e, im_e) in ((1, ((O+2, '-', O+7), (O+3, '+', O+6))), (2, ((O, '-', O+4), (O+1, '-', O+5))), (3, ((O+2, '+', O+7), (O+3, '-', O+6)))):
            op = lambda sg: 'v_add_f32' if sg == '+' else 'v_sub_f32'
            A(f'{op(re_e[1])} v{O8}, v{re_e[0]}, v{re_e[2]}\n{op(im_e[1])} v{O9}, v{im_e[0]}, v{im_e[2]}')
            tr, ti = TW + 2*(r-1), TW + 2*(r-1) + 1
            A(f'v_mul_f32 v{s(r,0)}, v{O8}, v{tr}\nv_mul_f32 v{s(r,1)}, v{O9}, v{tr}')
            A(f'v_fma_f32 v{s(r,0)}, -v{O9}, v{ti}, v{s(r,0)}\nv_fma_f32 v{s(r,1)}, v{O8}, v{ti}, v{s(r,1)}')
    A('s_branch P2_fin_store')
    A.label('P2_special_fin')
    A(f's_mov_b32 s86, {f32hex(2.0**-21)}\ns_mov_b32 s35, {f32hex(2.0**-20)}\ns_mov_b32 s36, {f32hex(2.0**-20 * 0.7071067811865476)}')
    for x in range(4):
        v = lambda j, c: V + (j*2+c)*4 + x
        s = lambda r, c: S + (r*2+c)*4 + x
        A(f'v_add_f32 v{O}, v{v(0,0)}, v{v(0,1)}\nv_sub_f32 v{O+1}, v{v(0,0)}, v{v(0,1)}\nv_mul_f32 v{O}, s86, v{O}\nv_mul_f32 v{O+1}, s86, v{O+1}')
        A(f'v_fma_f32 v{s(0,0)}, v{v(1,0)}, s35, v{O}\nv_fma_f32 v{s(1,0)}, -v{v(1,1)}, s35, v{O+1}')
        A(f'v_fma_f32 v{s(2,0)}, -v{v(1,0)}, s35, v{O}\nv_fma_f32 v{s(3,0)}, v{v(1,1)}, s35, v{O+1}')
        A(f'v_add_f32 v{O}, v{v(2,0)}, v{v(3,0)}\nv_mul_f32 v{s(0,1)}, s35, v{O}')
        A(f'v_sub_f32 v{O}, v{v(2,0)}, v{v(2,1)}\nv_sub_f32 v{O}, v{O}, v{v(3,0)}\nv_sub_f32 v{O}, v{O}, v{v(3,1)}\nv_mul_f32 v{s(1,1)}, s36, v{O}')
        A(f'v_sub_f32 v{O}, v{v(3,1)}, v{v(2,1)}\nv_mul_f32 v{s(2,1)}, s35, v{O}')
        A(f'v_sub_f32 v{O}, v{v(3,0)}, v{v(3,1)}\nv_sub_f32 v{O}, v{O}, v{v(2,0)}\nv_sub_f32 v{O}, v{O}, v{v(2,1)}\nv_mul_f32 v{s(3,1)}, s36, v{O}')
    A('s_lshl_b32 s36, s31, 9')
    A.label('P2_fin_store')
    for r in range(4):
        for c in range(2):
            b = S + (r*2+c)*4
            A(f'v_cvt_pk_bf16_f32 v{b}, v{b}, v{b+1}\nv_cvt_pk_bf16_f32 v{b+1}, v{b+2}, v{b+3}')
    for r in range(4):
        for c in range(2):
            b = S + (r*2+c)*4
            A(f's_add_u32 s35, s36, {(r << 20) + c*2048}')
            vm.op(f'buffer_store_dwordx2 v[{b}:{b+1}], v{T+2}, s[8:11], s35 offen sc0 sc1', 'TS')

def p2_special(A):
    T = T2
    A.label('P2_special_w')
    ZB = SB + 65536
    A('s_waitcnt vmcnt(0)')
    A('s_mov_b64 exec, 1')
    for rho, e in ((0, 64), (8, 66)):
        A(f'v_accvgpr_read_b32 v{T}, a{32+rho}\nv_accvgpr_read_b32 v{T+1}, a{48+rho}\nv_accvgpr_read_b32 v{T+2}, a{e}\nv_accvgpr_read_b32 v{T+3}, a{e+1}')
        A(f'v_add_f32 v{T}, v{T}, v{T+2}\nv_sub_f32 v{T+1}, v{T+1}, v{T+3}\nv_mul_f32 v{T}, 0.5, v{T}\nv_mul_f32 v{T+1}, 0.5, v{T+1}')
        A(f'v_accvgpr_write_b32 a{32+rho}, v{T}\nv_accvgpr_write_b32 a{48+rho}, v{T+1}')
    A('s_mov_b64 exec, -1')
    A(f'v_and_b32 v{T}, 31, v0\nv_lshrrev_b32 v{T+1}, 5, v0\nv_lshl_add_u32 v{T}, v{T+1}, 7, v{T}      ; k1 + 128 h')
    A(f'v_lshlrev_b32 v{T+2}, 2, v{T}\nv_add_u32 v{T+2}, {ZB}, v{T+2}')
    for rho in range(16):
        kk = 8*(rho >> 2) + (rho & 3)
        A(f'ds_write_b32 v{T+2}, v{CR+rho} offset:{kk*128}\nds_write_b32 v{T+2}, v{CI+rho} offset:{4352 + kk*128}')
    A(f's_mov_b64 exec, 1\nds_write_b32 v{T+2}, v{CR} offset:4096\nds_write_b32 v{T+2}, v{CI} offset:{4352+4096}\ns_mov_b64 exec, -1')
    A(f'v_sub_u32 v{T+3}, 160, v{T}\nv_lshlrev_b32 v{T+3}, 2, v{T+3}\nv_add_u32 v{T+3}, {ZB}, v{T+3}')
    A('s_waitcnt lgkmcnt(0)')
    for rho in range(16):
        kk = 8*(rho >> 2) + (rho & 3)
        cj = rho >= 8
        A(f'ds_read_b32 v{T+4}, v{T+3} offset:{(27-kk)*128}\nds_read_b32 v{T+5}, v{T+3} offset:{4352 + (27-kk)*128}')
        A(f'v_accvgpr_read_b32 v{T+6}, a{32+rho}\nv_accvgpr_read_b32 v{T+7}, a{48+rho}')
        A('s_waitcnt lgkmcnt(0)')
        A(f'v_add_f32 v{T+8}, v{CR+rho}, v{T+4}\nv_sub_f32 v{T+9}, v{CI+rho}, v{T+5}\nv_sub_f32 v{T+10}, v{CR+rho}, v{T+4}\nv_add_f32 v{T+11}, v{CI+rho}, v{T+5}')
        sg = '' if cj else '-'; sg2 = '-' if cj else ''
        A(f'v_mul_f32 v{CR+rho}, v{T+8}, v{WR+rho}\nv_fma_f32 v{CR+rho}, {sg}v{T+9}, v{WI+rho}, v{CR+rho}')
        A(f'v_fma_f32 v{CR+rho}, v{T+10}, v{T+6}, v{CR+rho}\nv_fma_f32 v{CR+rho}, {sg}v{T+11}, v{T+7}, v{CR+rho}')
        A(f'v_mul_f32 v{CI+rho}, v{T+9}, v{WR+rho}\nv_fma_f32 v{CI+rho}, {sg2}v{T+8}, v{WI+rho}, v{CI+rho}')
        A(f'v_fma_f32 v{CI+rho}, v{T+11}, v{T+6}, v{CI+rho}\nv_fma_f32 v{CI+rho}, {sg2}v{T+10}, v{T+7}, v{CI+rho}')
        A(f'v_mul_f32 v{CR+rho}, 0.5, v{CR+rho}\nv_mul_f32 v{CI+rho}, 0.5, v{CI+rho}')
    A('s_branch P2_w_done')

def p3(A, opt, vm, st):
    R = k3b.K3Regs; L = R.LANE
    STG3, RING, EXT0 = k3b.STG3, k3b.RING, k3b.EXT0
    ptr_srd(A, 12, P_WS, WS_H, 16 << 20)
    ptr_srd(A, 60, P_W2, 0, 3584*1024*2)
    ptr_srd(A, 64, P_WS, WS_T, 4 << 20)
    A(f's_lshl_b32 s35, s24, 20\ns_mul_i32 s39, s23, {56*8192}\ns_add_u32 s46, s35, s39       ; h base')
    A(f's_mul_i32 s39, s23, {1792*2048}\ns_lshl_b32 s35, s30, 8\ns_add_u32 s47, s39, s35      ; w2 base')
    A('s_and_b32 s39, s24, 3\ns_lshl_b32 s39, s39, 20\ns_add_u32 s51, s39, s35      ; T base')
    A(f's_lshl_b32 s35, s31, 12\nv_lshlrev_b32 v2, 4, v0\nv_add_u32 v2, s35, v2')
    A(f'v_lshrrev_b32 v8, 4, v0     ; l>>4\nv_and_b32 v9, 15, v0    ; pos')
    for q in range(4):
        A(f'v_add_u32 v10, {4*q}, v8')
        A('v_and_b32 v11, 7, v10\nv_lshrrev_b32 v12, 1, v9\nv_xor_b32 v11, v11, v12\nv_lshlrev_b32 v11, 5, v11')
        A('v_and_b32 v12, 1, v9\nv_lshl_add_u32 v11, v12, 4, v11')
        A('v_lshl_add_u32 v11, v10, 11, v11')
        A(f's_lshl_b32 s35, s31, 15\ns_sub_u32 s35, s35, {1024*q}')
        A(f'v_add_u32 v{4+q}, s35, v11')
    A('s_lshl_b32 s35, s31, 12')
    for b in range(4):
        A(f's_add_u32 s{52+2*b}, s35, {b*STG3}\ns_add_u32 s{53+2*b}, s35, {b*STG3+16384}')
    for k in range(4):
        A(f's_add_u32 s35, s26, {k}\ns_and_b32 s35, s35, 3')
        A(f's_lshl_b32 s{76+k}, s35, 14\ns_lshl_b32 s{80+k}, s35, 17')
    def issue_w(buf, tag, fill=None, n=0):
        A(f's_add_u32 s85, s47, s{80+buf}\ns_mov_b32 m0, s{53+2*buf}\ns_nop 0')
        for q in range(4):
            vm.op(f'buffer_load_dwordx4 v{4+q}, s[60:63], s85 offen offset:{q*1024} lds', tag)
            if fill: fill.emit(n)
    def issue_h(buf, tag, fill=None, n=0):
        A(f's_add_u32 s84, s46, s{76+buf}\ns_mov_b32 m0, s{52+2*buf}\ns_nop 0')
        for q in range(4):
            vm.op(f'buffer_load_dwordx4 v2, s[12:15], s84 offen offset:{q*1024} sc1 lds', tag)
            if fill: fill.emit(n)
    for b in range(4): issue_w(b, f'W{b}')
    p2_finish(A, opt, vm, st)
    A(f'v_mov_b32 v{L}, v0')
    stamp(A, opt, 7, PSTV)
    ptr_srd(A, 16, P_WS, WS_FLAG, 32768)
    A('s_lshl_b32 s35, s24, 4\ns_add_u32 s35, s35, s22\ns_lshl_b32 s35, s35, 7\nv_lshlrev_b32 v13, 2, v0')
    poll(A, 'P3_pollh', 16, 13, 's35', 1, 14, None, lanes_mask='0xff')
    vm.q = []
    stamp(A, opt, 8, PSTV)
    for b in range(4): issue_h(b, f'H{b}')
    A(f's_add_u32 s46, s46, {4*16384}\ns_add_u32 s47, s47, {4*64*2048}')
    A(f'v_mov_b32 v13, {CNT+8}\nv_mov_b32 v14, 1')
    A('s_mov_b64 exec, 1\nds_add_rtn_u32 v15, v13, v14\ns_waitcnt lgkmcnt(0)\ns_mov_b64 exec, -1')
    ptr_srd(A, 16, P_DBG, 0, 256)
    A('v_readfirstlane_b32 s35, v15\ns_cmp_eq_u32 s35, 3\ns_cbranch_scc0 P3_not')
    A('v_mov_b32 v13, 128\ns_mov_b64 exec, 1\nbuffer_atomic_add v14, v13, s[16:19], 0 offen sc1\ns_mov_b64 exec, -1\ns_branch P3_not2')
    A.label('P3_not')
    A('v_mov_b32 v13, 0x1000\nbuffer_load_dword v14, v13, s[16:19], 0 offen')
    A.label('P3_not2')
    class LA:
        pass
    F = Fill(A, vm)
    F.add('\n'.join(k3b.ext_gen(opt, T=112)).replace('s33', 's35').replace('s34', 's39'))
    if opt.get('noext'):
        for k in range(64): F.add(f'v_mov_b32 v{EXT0+k}, 0')
    F.add(f's_lshl_b32 s35, s31, 10\ns_add_u32 s35, s35, {RING}\nv_lshlrev_b32 v12, 4, v{L}\nv_add_u32 v12, s35, v12')
    vm.wait('H0')
    A('s_barrier       ; Ba2')
    vm.wait('H1')
    A('s_barrier       ; Bb2')
    stamp(A, opt, 9, PSTV)
    nper = (len(F.q) + 22*8 - 1) // (22*8)
    tags = {s: f'H{s}' for s in range(4)}
    for s in range(24):
        buf = s & 3
        tag = f'M{s+4}'; tags[s+4] = tag
        issue_h(buf, tag, F, nper); issue_w(buf, tag, F, nper)
        if buf == 3: A(f's_add_u32 s46, s46, {4*16384}\ns_add_u32 s47, s47, {4*64*2048}')
        if s == 20:
            A('v_mov_b32 v13, 128')
            vm.op('buffer_load_dword v14, v13, s[16:19], 0 offen sc0 sc1', 'CT')
        vm.wait(tags[s+2])
        A('s_barrier')
    F.flush()
    assert 'CT' not in vm.q
    A('v_readfirstlane_b32 s35, v14\ns_cmp_eq_u32 s35, 256\ns_cbranch_scc1 P3_t_ok')
    A('v_mov_b32 v13, 128')
    poll(A, 'P3_pollt', 16, 13, 0, 256, 14, None)
    A.label('P3_t_ok')
    def wfrag(e):
        for ks in range(2):
            Fx = 2*e + ks
            A(f'ds_write_b128 v12, v[{EXT0+Fx*4}:{EXT0+Fx*4+3}] offset:{(e & 3)*8192 + ks*4096}')
    for E in range(4):
        tag = f'E{E}'; tags[28+E] = tag
        A(f's_mov_b32 m0, s{53+2*E}\ns_add_u32 s85, s51, {2*E*64*2048}')
        for q in range(4): vm.op(f'buffer_load_dwordx4 v{4+q}, s[64:67], s85 offen offset:{q*1024} sc1 lds', tag)
        A(f's_mov_b32 m0, s{52+2*E}\ns_add_u32 s85, s51, {(2*E+1)*64*2048}')
        for q in range(4): vm.op(f'buffer_load_dwordx4 v{4+q}, s[64:67], s85 offen offset:{q*1024} sc1 lds', tag)
        wfrag(E)
        vm.wait(tags[24+E+2], ' lgkmcnt(0)')
        A('s_barrier')
    A('s_barrier')
    for e in range(4, 8):
        wfrag(e)
        if e == 4: vm.wait('E2', ' lgkmcnt(0)')
        elif e == 6: vm.wait('E3', ' lgkmcnt(0)')
        else: A('s_waitcnt lgkmcnt(0)')
        A('s_barrier')
    A('s_barrier\ns_barrier\ns_barrier')
    if opt.get('stamp'):
        ptr_srd(A, 8, P_WS, WS_DBG + (1 << 16), 1 << 20)
        A('s_cmp_lg_u32 s20, 4\ns_cbranch_scc1 MG_end')
        A(f's_lshl_b32 s33, s2, 8\nv_lshlrev_b32 v1, 2, v0\nbuffer_store_dword v{PSTV}, v1, s[8:11], s33 offen')

def gen_mega(A, name, opt=None):
    opt = opt or {}
    kernel_header(A, name)
    A('s_cmp_ge_u32 s2, 256\ns_cbranch_scc1 MG_end')
    for reg, off in ((P_X, 0), (P_WR, 8), (P_WI, 16), (P_W1, 32), (P_W2, 40), (P_GW, 48), (P_OUT, 56), (P_DBG, 64), (P_WS, 72)):
        A(f's_load_dwordx2 s[{reg}:{reg+1}], s[0:1], {off}')
    A('v_lshrrev_b32 v1, 6, v0\ns_nop 0\nv_readfirstlane_b32 s20, v1')
    A('s_and_b32 s33, s2, 7\ns_lshr_b32 s34, s2, 3          ; xcd, l')
    A('s_lshr_b32 s35, s33, 2          ; mg')
    A('s_and_b32 s27, s33, 3           ; ng')
    A('s_and_b32 s21, s34, 7           ; u')
    A('s_lshr_b32 s24, s21, 1\ns_lshl_b32 s24, s24, 2\ns_lshl_b32 s35, s35, 1\ns_add_u32 s24, s24, s35\ns_and_b32 s35, s21, 1\ns_add_u32 s24, s24, s35     ; i = 4 (u>>1) + 2 mg + (u&1)')
    A('s_lshr_b32 s22, s34, 3\ns_lshl_b32 s35, s27, 2\ns_add_u32 s22, s22, s35    ; j = 4 ng + (l>>3)')
    A('s_mov_b32 s25, s22\ns_lshr_b32 s23, s22, 3\ns_and_b32 s30, s22, 7')
    A('s_add_u32 s26, s21, s22\ns_and_b32 s26, s26, 3       ; rotation c = (u + j) & 3')
    A('s_waitcnt lgkmcnt(0)')
    A('s_cmp_ge_u32 s20, 4\ns_cbranch_scc1 MG_producer')
    c1(A, opt)
    c2(A, opt)
    A.label('MG_producer')
    vm = VM(A)
    p1(A, opt, vm)
    st = p2(A, opt, vm)
    p3(A, opt, vm, st)
    A('s_branch MG_end')
    p2_special(A)
    A.label('MG_end')
    A('s_endpgm')
    kernel_desc(A, name, 256, 160)
LDS_MEGA = 163840
```

```python
import sys
sys.path.insert(0, 'dev')
import build, mega
P = 'gated_mix__spectral_gfnet__dense_activation_silu__prompt'
KN = P + '_kernel'
def make(opt=None):
    txt = build.build([(KN, mega.gen_mega, 256, 512, mega.LDS_MEGA)], opt or {})
    return txt.replace('; @launch kernel=' + KN, '; @launch')
def write(path, opt=None):
    hdr = open(f'cdna_kernels/{P}.s.ref').read().split('; Override launch geometry')[0]
    open(path, 'w').write(hdr + make(opt))
if __name__ == '__main__':
    write(f'cdna_kernels/{P}.s')
```
